```python
import torch

def _softmax(x, axis=-1):
    return torch.softmax(x, dim=axis)
def _gelu(x):
    return torch.nn.functional.gelu(x, approximate="tanh")
def _silu(x):
    return torch.nn.functional.silu(x)
def _sigmoid(x):
    return torch.sigmoid(x)
def _layernorm(x, axis=-1, eps=1e-5):
    m = x.mean(dim=axis, keepdim=True)
    v = x.var(dim=axis, keepdim=True, unbiased=False)
    return (x - m) / torch.sqrt(v + eps)
def _scatter_add(tgt, idx, src, axis=0):
    return tgt.clone().index_add_(axis, idx, src)
def _segment_sum(src, seg, n):
    out = torch.zeros((n,) + src.shape[1:], dtype=src.dtype)
    return out.index_add_(0, seg, src)
def _pad(x, pw):
    flat = tuple(v for pair in reversed(pw) for v in pair)
    return torch.nn.functional.pad(x, flat)

kernel_name = 'standalone__adm_resblock__diffusion'

def setup_inputs():

    _w = (lambda a: (lambda t: t.to(torch.bfloat16) if t.is_floating_point() else t)(torch.as_tensor(a)))
    B, C, HW, E = 2, 128, 64, 384
    sc = (9.0 * C) ** -0.5
    return {
        "x": _w((lambda *s: torch.randn(*s, dtype=torch.bfloat16) * 0.05)(B, C, HW, HW)),
        "t_emb": _w((lambda *s: torch.randn(*s, dtype=torch.bfloat16) * 0.4)(B, E)),
        "g1": _w(1.0 + 0.1 * (lambda *s: torch.randn(*s, dtype=torch.bfloat16) * 0.4)(C)),
        "be1": _w(0.1 * (lambda *s: torch.randn(*s, dtype=torch.bfloat16) * 0.4)(C)),
        "w1": _w((lambda *s: torch.randn(*s, dtype=torch.bfloat16) * 0.4)(C, C, 3, 3) * sc),
        "w_emb": _w((lambda *s: torch.randn(*s, dtype=torch.bfloat16) * 0.4)(E, C) * (E ** -0.5)),
        "g2": _w(1.0 + 0.1 * (lambda *s: torch.randn(*s, dtype=torch.bfloat16) * 0.4)(C)),
        "be2": _w(0.1 * (lambda *s: torch.randn(*s, dtype=torch.bfloat16) * 0.4)(C)),
        "w2": _w((lambda *s: torch.randn(*s, dtype=torch.bfloat16) * 0.4)(C, C, 3, 3) * sc),
    }

def reference(x, t_emb, g1, be1, w1, w_emb, g2, be2, w2):
    B, C, H, W = x.shape
    G, eps = 4, 1e-5
    def gn(z, gamma, beta):
        zr = z.reshape(B, G, (C // G) * H * W)
        mu = zr.mean(-1).reshape(B, G, 1)
        var = ((zr - mu) ** 2).mean(-1).reshape(B, G, 1)
        zn = ((zr - mu) / torch.sqrt(var + eps)).reshape(B, C, H, W)
        return zn * gamma.reshape(1, C, 1, 1) + beta.reshape(1, C, 1, 1)
    def conv3(z, w):
        zp = _pad(z, ((0, 0), (0, 0), (1, 1), (1, 1)))
        taps = [torch.einsum("bchw,oc->bohw", zp[:, :, i:i+H, j:j+W], w[:, :, i, j]) for i in range(3) for j in range(3)]
        out = taps[0]
        for t in taps[1:]:
            out = out + t
        return out
    h = conv3(_silu(gn(x, g1, be1)), w1)
    emb = _silu(t_emb) @ w_emb
    h = h + emb.reshape(B, C, 1, 1)
    h = conv3(_silu(gn(h, g2, be2)), w2)
    return x + h
```

```python
import re
TRANS = ("v_exp_f32", "v_rcp_f32", "v_rsq_f32", "v_log_f32", "v_sqrt_f32", "v_sin_f32", "v_cos_f32")
def regs_of(op):
    op = op.strip()
    m = re.fullmatch(r"-?(?:abs\()?([vas])\[(\d+):(\d+)\]\)?", op)
    if m: return [(m.group(1), i) for i in range(int(m.group(2)), int(m.group(3)) + 1)]
    m = re.fullmatch(r"-?(?:abs\()?([vas])(\d+)\)?", op)
    if m: return [(m.group(1), int(m.group(2)))]
    if op == "vcc": return [("s", 106), ("s", 107)]
    if op == "exec": return [("s", 126), ("s", 127)]
    if op == "m0": return [("s", 124)]
    return []
class Ins:
    def __init__(s, text):
        s.text = text
        t = text.split(";")[0].strip()
        p = t.split(None, 1)
        s.mn = p[0]
        rest = p[1] if len(p) > 1 else ""
        core = re.sub(r"\s+\w+:\[[^\]]*\]", "", " " + rest).strip()
        ops = [o.strip() for o in core.split(",")] if core else []
        if ops:
            last = ops[-1].split()
            ops[-1] = last[0] if last else ""
        s.ops = ops
        mn = s.mn
        s.mfma = mn.startswith("v_mfma")
        s.valu = mn.startswith("v_") and not s.mfma
        s.trans = any(mn.startswith(x) for x in TRANS)
        s.dpp = "_dpp" in mn or "row_" in rest or "quad_perm" in rest
        s.perml = mn.startswith("v_permlane")
        s.rdlane = mn.startswith("v_readlane") or mn.startswith("v_readfirstlane")
        s.vmem = mn.startswith("buffer_") or mn.startswith("global_")
        s.ds = mn.startswith("ds_")
        s.salu = mn.startswith("s_")
        s.store = (s.vmem and "store" in mn) or (s.ds and "write" in mn)
        R = [regs_of(o) for o in ops]
        s.w = []; s.r = []
        if s.store or mn in ("s_cmp_eq_u32", "s_cmp_lg_u32", "s_cmp_lt_u32", "s_cmp_ge_u32", "s_cmp_gt_u32", "s_cmp_le_u32", "s_cmp_eq_u64", "s_cmp_lg_u64"):
            for x in R: s.r += x
        elif mn.startswith(("s_waitcnt", "s_nop", "s_barrier", "s_branch", "s_cbranch", "s_endpgm", "s_setprio", "s_sleep")):
            pass
        elif s.perml:
            s.w = R[0] + R[1]; s.r = R[0] + R[1]
        elif R:
            s.w = list(R[0])
            for x in R[1:]: s.r += x
            if mn.startswith(("v_fmac", "v_dot2c", "v_pk_fmac")) or s.dpp: s.r += R[0]
            if mn.startswith("v_cndmask") and len(ops) == 3: s.r += regs_of("vcc")
            if mn.startswith(("v_add_co", "v_sub_co")): s.w += R[1]
            if mn.startswith(("v_addc_co",)): s.w += R[1]
            if mn.startswith("s_and_saveexec") or mn.startswith("s_or_saveexec"): s.w += regs_of("exec")
        s.C = R[3] if s.mfma and len(R) > 3 else []
        s.AB = (R[1] + R[2]) if s.mfma else []
        s.states = 1
        if mn == "s_nop": s.states = int(ops[0]) + 1
        s.is_label = False
def need(p, c):
    n = 0
    pw = set(p.w); cr = set(c.r); cw = set(c.w)
    pv = {x for x in pw if x[0] in "va"}; ps = {x for x in pw if x[0] == "s"}
    if p.valu:
        if c.mfma and pv & cr: n = max(n, 2)
        if c.dpp and pv & cr: n = max(n, 2)
        if c.perml and pv & cr: n = max(n, 2)
        if c.rdlane and pv & cr: n = max(n, 1)
        if p.trans and c.valu and not c.trans and pv & cr: n = max(n, 1)
        if p.trans and c.trans and pv & cr: n = max(n, 1)
        if ps & cr:
            if c.vmem: n = max(n, 5)
            elif c.rdlane: n = max(n, 4)
            elif c.valu or c.mfma: n = max(n, 2)
            elif c.salu: n = max(n, 2)
    if p.mfma:
        if c.mfma:
            if pv & set(c.AB): n = max(n, 12)
            if pv & set(c.C) and set(p.w) != set(c.C): n = max(n, 10)
            if pv & cw and set(p.w) != set(c.C): n = max(n, 12)
        elif (c.valu or c.vmem or c.ds) and pv & (cr | cw): n = max(n, 12)
        if c.valu and set(p.C) & cw: n = max(n, 7)
    if p.vmem and p.store and ("x4" in p.mn or "x3" in p.mn or "x2" in p.mn):
        pd = {x for x in p.r if x[0] in "va"}
        if (c.valu or c.mfma) and pd & cw: n = max(n, 2)
        elif (c.vmem or c.ds) and pd & cw: n = max(n, 1)
    if p.salu and ("s", 124) in pw and c.vmem and " lds" in c.text: n = max(n, 1)
    return n
class Asm:
    def __init__(s):
        s.out = []; s.hist = []; s.vm = []; s.lg = []; s.nops = 0
    def raw(s, t): s.out.append(t)
    def label(s, n):
        s.out.append(n + ":")
    def fence(s):
        s.I("s_nop 7"); s.I("s_nop 3")
    def I(s, text):
        c = Ins(text)
        dist = 0; req = 0
        for p in reversed(s.hist[-24:]):
            k = need(p, c) - dist
            if k > req: req = k
            dist += p.states
            if dist >= 20: break
        while req > 0:
            k = min(req, 16); nop = Ins(f"s_nop {k-1}"); s.out.append("  " + nop.text); s.hist.append(nop); req -= k; s.nops += 1
        s.out.append("  " + text); s.hist.append(c)
    def V(s, text, tag=None):
        s.I(text); s.vm.append(tag)
    def D(s, text, tag=None):
        s.I(text); s.lg.append(tag)
    def cnt(s, q, tag):
        idx = max(i for i, t in enumerate(q) if t == tag)
        return len(q) - 1 - idx, idx
    def wait(s, vm=None, lg=None):
        parts = []
        if vm is not None:
            if vm == "all": n = 0; s.vm = []
            elif vm not in s.vm: n = None
            else:
                n, i = s.cnt(s.vm, vm); s.vm = s.vm[i + 1:]
            if n is not None:
                assert n <= 63, n
                parts.append(f"vmcnt({n})")
        if lg is not None:
            if lg == "all": n = 0; s.lg = []
            elif lg not in s.lg: n = None
            else:
                n, i = s.cnt(s.lg, lg); s.lg = s.lg[i + 1:]
            if n is not None:
                assert n <= 15, n
                parts.append(f"lgkmcnt({n})")
        if parts: s.I("s_waitcnt " + " ".join(parts))
    def text(s): return "\n".join(s.out) + "\n"
class Pool:
    def __init__(s, lo, hi, pre):
        s.free = set(range(lo, hi)); s.pre = pre; s.hw = lo
    def get(s, n=1, al=None):
        al = al or (1 if n == 1 else 2)
        lo = min(s.free)
        b = (lo + al - 1) // al * al
        while True:
            if all((b + i) in s.free for i in range(n)): break
            b += al
            assert b < 1000, "out of registers"
        for i in range(n): s.free.discard(b + i)
        s.hw = max(s.hw, b + n)
        return b
    def put(s, b, n=1):
        for i in range(n): s.free.add(b + i)
def vr(b, n=1): return f"v{b}" if n == 1 else f"v[{b}:{b+n-1}]"
def ar(b, n=1): return f"a{b}" if n == 1 else f"a[{b}:{b+n-1}]"
def sr(b, n=1): return f"s{b}" if n == 1 else f"s[{b}:{b+n-1}]"
```

```python
import sys
from asmlib import *
XT = 0; W1T = 0x200000; WSZ = 294912; W2T = W1T + WSZ
ST1 = 0x290000; ST2 = 0x292000; EMB = 0x294000; PROF = 0x300000
WS_BYTES = 0x400000
A1 = 0; A1R = 3488; PP = 272
XR = 8 * A1R
A2 = XR + 32 * PP; A2R = 2944
LDS2 = A2 + 6 * A2R
SENT = 0xFFFFFFFF
NLOG2E = 0xBFB8AA3B
PX, PT, PG1, PB1, PW1, PWE, PG2, PB2, PW2, POUT, PDBG, PWS = [36 + 2 * i for i in range(12)]

def header(a, name):
    a.raw(f".text\n.globl {name}\n.p2align 8\n.type {name},@function\n{name}:")
def descriptor(name, vg, accum, sg=102):
    return f""".section .rodata,"a"
.p2align 6
.amdhsa_kernel {name}
  .amdhsa_next_free_vgpr {vg}
  .amdhsa_next_free_sgpr {sg}
  .amdhsa_accum_offset {accum}
  .amdhsa_group_segment_fixed_size 0
  .amdhsa_kernarg_size 96
  .amdhsa_user_sgpr_count 2
  .amdhsa_user_sgpr_kernarg_segment_ptr 1
  .amdhsa_system_sgpr_workgroup_id_x 1
.end_amdhsa_kernel
"""
def load_kernarg(a):
    a.I("s_load_dwordx16 s[36:51], s[0:1], 0")
    a.I("s_load_dwordx8 s[52:59], s[0:1], 64")
def allreduce(a, vals, tmps, quad_only=False):
    steps = ["quad_perm:[1,0,3,2]", "quad_perm:[2,3,0,1]"] if quad_only else ["row_ror:8", "row_ror:4", "row_ror:2", "row_ror:1"]
    for st in steps:
        for v in vals: a.I(f"v_add_f32_dpp v{v}, v{v}, v{v} {st} row_mask:0xf bank_mask:0xf")
    for sw in ("v_permlane16_swap_b32", "v_permlane32_swap_b32"):
        for v, t in zip(vals, tmps): a.I(f"v_mov_b32 v{t}, v{v}")
        for v, t in zip(vals, tmps): a.I(f"{sw} v{v}, v{t}")
        for v, t in zip(vals, tmps): a.I(f"v_add_f32 v{v}, v{v}, v{t}")
class Prof:
    def __init__(s, a, on):
        s.a = a; s.on = on; s.n = 0
    def rt(s, k):
        if s.on:
            s.a.I("s_memrealtime s[98:99]"); s.a.I("s_waitcnt lgkmcnt(0)"); s.a.I(f"s_mov_b32 s{96+k}, s98"); s.a.lg = []
    def stamp(s):
        if not s.on: return
        assert s.n < 12
        s.a.I("s_memtime s[98:99]"); s.a.I("s_waitcnt lgkmcnt(0)"); s.a.I(f"s_mov_b32 s{84+s.n}, s98"); s.a.lg = []; s.n += 1
    def dump(s, sw, kidx):
        if not s.on: return
        a = s.a
        s.rt(1)
        a.I("s_mov_b64 exec, 1")
        a.I("s_lshl_b32 s3, s2, 2"); a.I(f"s_add_u32 s3, s3, s{sw}"); a.I("s_lshl_b32 s3, s3, 6")
        a.I(f"s_add_u32 s3, s3, {PROF + kidx * 0x20000}")
        a.I("v_mov_b32 v1, s3")
        for i in range(14):
            if i < 12 and i >= s.n: continue
            a.I(f"v_mov_b32 v2, s{84+i}")
            a.I(f"global_store_dword v1, v2, s[{PWS}:{PWS+1}] offset:{4*i}")

def gen_k1(prof):
    a = Asm(); name = "prep_kernel"; header(a, name)
    P = Prof(a, prof)
    P.rt(0); P.stamp()
    a.I("s_cmp_ge_u32 s2, 280"); a.I("s_cbranch_scc1 K1_END")
    load_kernarg(a)
    L = 1; SW = 4
    a.I("v_lshrrev_b32 v2, 6, v0"); a.I(f"v_and_b32 v{L}, 63, v0")
    a.I(f"v_readfirstlane_b32 s{SW}, v2")
    a.I("s_cmp_lt_u32 s2, 16"); a.I("s_cbranch_scc1 K1_W")
    a.I("s_cmp_lt_u32 s2, 24"); a.I("s_cbranch_scc1 K1_E")
    a.I("s_sub_u32 s5, s2, 24")
    a.I("s_and_b32 s6, s5, 7"); a.I("s_lshr_b32 s7, s6, 2"); a.I("s_and_b32 s6, s6, 3"); a.I("s_lshr_b32 s5, s5, 3")
    a.I("s_lshr_b32 s8, s5, 1"); a.I("s_lshl_b32 s9, s6, 4"); a.I("s_add_u32 s8, s8, s9")
    a.I("s_and_b32 s9, s5, 1")
    a.I("s_lshl_b32 s10, s6, 5"); a.I("s_add_u32 s10, s10, s5")
    a.I("s_lshl_b32 s11, s7, 7"); a.I(f"s_lshl_b32 s12, s{SW}, 5"); a.I("s_add_u32 s11, s11, s12")
    a.I("s_lshl_b32 s11, s11, 13"); a.I("s_lshl_b32 s12, s8, 7"); a.I("s_add_u32 s11, s11, s12")
    a.I("s_lshl_b32 s12, s9, 6"); a.I("s_add_u32 s11, s11, s12")
    a.I(f"v_lshrrev_b32 v2, 2, v{L}"); a.I(f"v_and_b32 v3, 3, v{L}"); a.I("v_lshlrev_b32 v3, 4, v3")
    a.I("v_lshl_add_u32 v2, v2, 13, v3"); a.I("v_add_u32 v2, s11, v2"); a.I("v_add_u32 v3, 0x20000, v2")
    a.I("s_waitcnt lgkmcnt(0)")
    a.V(f"global_load_dwordx4 v[8:11], v2, s[{PX}:{PX+1}]", "x0")
    a.V(f"global_load_dwordx4 v[12:15], v3, s[{PX}:{PX+1}]", "x1")
    a.I(f"s_lshl_b32 s12, s{SW}, 11")
    a.I(f"v_lshl_add_u32 v4, v{L}, 4, s12")
    a.I(f"v_lshrrev_b32 v5, 5, v{L}"); a.I("v_lshlrev_b32 v5, 3, v5")
    a.I(f"v_bfe_u32 v6, v{L}, 2, 2"); a.I("v_add_u32 v5, v5, v6"); a.I("v_lshlrev_b32 v5, 6, v5")
    a.I(f"v_bfe_u32 v6, v{L}, 4, 1"); a.I("v_lshl_add_u32 v5, v6, 5, v5")
    a.I(f"v_and_b32 v6, 3, v{L}"); a.I("v_lshl_add_u32 v5, v6, 3, v5"); a.I("v_add_u32 v5, s12, v5")
    a.I("s_lshl_b32 s13, s7, 6"); a.I("s_add_u32 s13, s13, s8"); a.I("s_lshl_b32 s13, s13, 6")
    a.I("s_lshl_b32 s14, s9, 5"); a.I("s_add_u32 s13, s13, s14"); a.I("s_lshl_b32 s13, s13, 8")
    a.I(f"s_lshl_b32 s14, s{SW}, 6"); a.I("s_add_u32 s13, s13, s14")
    a.I(f"v_and_b32 v6, 31, v{L}"); a.I("v_lshlrev_b32 v6, 8, v6")
    a.I(f"v_lshrrev_b32 v7, 5, v{L}"); a.I("v_lshl_add_u32 v6, v7, 4, v6"); a.I("v_add_u32 v6, s13, v6")
    a.I("s_lshl_b32 s14, s7, 2"); a.I(f"s_add_u32 s14, s14, s{SW}"); a.I("s_lshl_b32 s14, s14, 7"); a.I("s_add_u32 s14, s14, s10"); a.I("s_lshl_b32 s14, s14, 3")
    a.I(f"s_add_u32 s15, s14, {ST2}"); a.I(f"s_add_u32 s14, s14, {ST1}")
    a.I("s_mov_b32 s16, 0x3f803f80")
    a.I("v_mov_b32 v16, 0"); a.I("v_mov_b32 v17, 0")
    a.wait(vm="x0")
    a.D("ds_write_b128 v4, v[8:11]")
    for k in range(4):
        a.I(f"v_dot2_f32_bf16 v16, v{8+k}, s16, v16"); a.I(f"v_dot2_f32_bf16 v17, v{8+k}, v{8+k}, v17")
    a.wait(vm="x1")
    a.D("ds_write_b128 v4, v[12:15] offset:1024")
    for k in range(4):
        a.I(f"v_dot2_f32_bf16 v16, v{12+k}, s16, v16"); a.I(f"v_dot2_f32_bf16 v17, v{12+k}, v{12+k}, v17")
    a.wait(lg="all")
    for k2 in range(2):
        for hh in range(2):
            a.D(f"ds_read_b64_tr_b16 v[{20+4*k2+2*hh}:{21+4*k2+2*hh}], v5 offset:{k2*1024+hh*256}", f"t{k2}")
    allreduce(a, [16, 17], [18, 19])
    a.wait(lg="t0")
    a.V(f"global_store_dwordx4 v6, v[20:23], s[{PWS}:{PWS+1}]")
    a.wait(lg="t1")
    a.V(f"global_store_dwordx4 v6, v[24:27], s[{PWS}:{PWS+1}] offset:32")
    P.stamp()
    a.I("s_mov_b64 exec, 1")
    a.I("v_mov_b32 v2, s14"); a.I("v_mov_b32 v3, s15"); a.I("v_mov_b32 v18, 0"); a.I("v_mov_b32 v19, -1")
    a.V(f"global_store_dwordx2 v2, v[16:17], s[{PWS}:{PWS+1}]")
    a.V(f"global_store_dwordx2 v3, v[18:19], s[{PWS}:{PWS+1}]")
    if prof:
        a.wait(vm="all"); P.stamp(); P.dump(SW, 0)
    a.I("s_endpgm")
    a.hist = []; a.vm = []; a.lg = []
    a.label("K1_W")
    a.I("s_lshl_b32 s5, s2, 2"); a.I(f"s_add_u32 s5, s5, s{SW}")
    a.I("s_lshr_b32 s6, s5, 5"); a.I("s_bfe_u32 s7, s5, 0x20003"); a.I("s_and_b32 s8, s5, 7")
    a.I(f"v_and_b32 v2, 31, v{L}"); a.I("s_lshl_b32 s9, s7, 5"); a.I("v_add_u32 v2, s9, v2")
    a.I("s_movk_i32 s9, 2304"); a.I("v_mul_lo_u32 v2, v2, s9")
    a.I(f"v_lshrrev_b32 v3, 5, v{L}"); a.I("s_lshl_b32 s9, s8, 1"); a.I("v_add_u32 v3, s9, v3")
    a.I("v_mul_u32_u24 v3, 144, v3"); a.I("v_add_u32 v2, v2, v3")
    a.I("s_lshl_b32 s9, s7, 3"); a.I("s_add_u32 s9, s9, s8"); a.I("s_mul_i32 s9, s9, 9216")
    a.I(f"s_mul_i32 s10, s6, {WSZ}"); a.I("s_add_u32 s9, s9, s10"); a.I(f"s_add_u32 s9, s9, {W1T}")
    a.I(f"v_lshl_add_u32 v4, v{L}, 4, s9"); a.I("v_add_u32 v5, 0x1000, v4"); a.I("v_add_u32 v6, 0x2000, v4")
    a.I("s_mov_b32 s12, 0x07060100"); a.I("s_mov_b32 s13, 0x05040302")
    a.I("s_waitcnt lgkmcnt(0)")
    a.I("s_cmp_eq_u32 s6, 0")
    a.I(f"s_cselect_b32 s10, s{PW1}, s{PW2}"); a.I(f"s_cselect_b32 s11, s{PW1+1}, s{PW2+1}")
    for k in range(9): a.V(f"global_load_dwordx4 v[{8+4*k}:{11+4*k}], v2, s[10:11] offset:{16*k}", f"w{k}")
    a.wait(vm="all")
    for t in range(9):
        o = 48 + 4 * (t % 3)
        for q in range(4):
            lo = 8 + 9 * q + t // 2; hi = 8 + 9 * q + (9 + t) // 2
            a.I(f"v_perm_b32 v{o+q}, v{hi}, v{lo}, s{12 + (t & 1)}")
        a.V(f"global_store_dwordx4 v{4 + t // 4}, v[{o}:{o+3}], s[{PWS}:{PWS+1}] offset:{(t % 4) * 1024}")
    a.I("s_endpgm")
    a.hist = []; a.vm = []; a.lg = []
    a.label("K1_E")
    a.I("s_sub_u32 s5, s2, 16"); a.I("s_lshl_b32 s5, s5, 2"); a.I(f"s_add_u32 s5, s5, s{SW}")
    a.I("s_lshr_b32 s6, s5, 4"); a.I("s_and_b32 s7, s5, 15")
    a.I("s_mul_i32 s8, s6, 768"); a.I(f"v_lshl_add_u32 v2, v{L}, 1, s8")
    a.I("s_lshl_b32 s8, s7, 4"); a.I(f"v_lshl_add_u32 v3, v{L}, 8, s8")
    for i in range(1, 6): a.I(f"v_add_u32 v{3+i}, {i*16384}, v3")
    a.I("s_lshl_b32 s8, s6, 9"); a.I("s_lshl_b32 s9, s7, 5"); a.I("s_add_u32 s8, s8, s9"); a.I(f"s_add_u32 s8, s8, {EMB}")
    a.I("s_waitcnt lgkmcnt(0)")
    for i in range(6): a.V(f"global_load_ushort v{10+i}, v2, s[{PT}:{PT+1}] offset:{128*i}", f"t{i}")
    for i in range(6): a.V(f"global_load_dwordx4 v[{16+4*i}:{19+4*i}], v{3+i}, s[{PWE}:{PWE+1}]", f"e{i}")
    for k in range(8): a.I(f"v_mov_b32 v{40+k}, 0")
    a.I(f"s_mov_b32 s12, {NLOG2E:#x}"); a.I("s_mov_b32 s13, 0xffff0000")
    a.wait(vm="t5")
    for i in range(6): a.I(f"v_lshlrev_b32 v{10+i}, 16, v{10+i}")
    for i in range(6): a.I(f"v_mul_f32 v{50+i}, s12, v{10+i}")
    for i in range(6): a.I(f"v_exp_f32 v{50+i}, v{50+i}")
    for i in range(6): a.I(f"v_add_f32 v{50+i}, 1.0, v{50+i}")
    for i in range(6): a.I(f"v_rcp_f32 v{50+i}, v{50+i}")
    for i in range(6): a.I(f"v_mul_f32 v{10+i}, v{10+i}, v{50+i}")
    for i in range(6):
        a.wait(vm=f"e{i}")
        for k in range(4):
            a.I(f"v_lshlrev_b32 v56, 16, v{16+4*i+k}"); a.I(f"v_and_b32 v57, s13, v{16+4*i+k}")
            a.I(f"v_fmac_f32 v{40+2*k}, v{10+i}, v56"); a.I(f"v_fmac_f32 v{41+2*k}, v{10+i}, v57")
    allreduce(a, list(range(40, 48)), list(range(50, 58)))
    a.I("s_mov_b64 exec, 1"); a.I("v_mov_b32 v2, s8")
    a.V(f"global_store_dwordx4 v2, v[40:43], s[{PWS}:{PWS+1}]")
    a.V(f"global_store_dwordx4 v2, v[44:47], s[{PWS}:{PWS+1}] offset:16")
    a.label("K1_END")
    a.I("s_endpgm")
    return a.text() + descriptor(name, 64, 64)
```

```python
from gen import *
def silu_pairs(a, V, Z, n, SL, SO):
    for k in range(n): a.I(f"v_pk_mul_f32 {vr(Z+2*k,2)}, {vr(V+2*k,2)}, {sr(SL,2)}")
    for k in range(2 * n): a.I(f"v_exp_f32 v{Z+k}, v{Z+k}")
    for k in range(n): a.I(f"v_pk_add_f32 {vr(Z+2*k,2)}, {vr(Z+2*k,2)}, {sr(SO,2)}")
    for k in range(2 * n): a.I(f"v_rcp_f32 v{Z+k}, v{Z+k}")
    for k in range(n): a.I(f"v_pk_mul_f32 {vr(V+2*k,2)}, {vr(V+2*k,2)}, {vr(Z+2*k,2)}")
def mean_rstd(a, S, Q, MR, T):
    a.I(f"v_mul_f32 v{MR+2}, {-1.0/131072.0!r}, v{S}".replace(repr(-1.0/131072.0), "0xb7000000"))
    a.I(f"v_mul_f32 v{T}, 0x37000000, v{Q}")
    a.I(f"v_fma_f32 v{T}, -v{MR+2}, v{MR+2}, v{T}")
    a.I(f"v_max_f32 v{T}, 0, v{T}")
    a.I(f"v_add_f32 v{T}, 0x3727c5ac, v{T}")
    a.I(f"v_rsq_f32 v{MR}, v{T}")
def scale_shift(a, G, B, n, MR):
    for k in range(n): a.I(f"v_pk_mul_f32 {vr(G+2*k,2)}, {vr(G+2*k,2)}, {vr(MR,2)} op_sel_hi:[1,0]")
    for k in range(n): a.I(f"v_pk_fma_f32 {vr(B+2*k,2)}, {vr(G+2*k,2)}, {vr(MR+2,2)}, {vr(B+2*k,2)} op_sel_hi:[1,0,1]")
def unpack(a, D, S, n, SHI):
    for k in range(n):
        a.I(f"v_lshlrev_b32 v{D+2*k}, 16, v{S+k}"); a.I(f"v_and_b32 v{D+2*k+1}, s{SHI}, v{S+k}")

def gen_k2(prof, cfg):
    a = Asm(); name = "main_kernel"; header(a, name)
    P = Prof(a, prof)
    VP = Pool(1, 256, "v")
    P.rt(0); P.stamp()
    a.I("s_cmp_ge_u32 s2, 256"); a.I("s_cbranch_scc1 K2_END")
    load_kernarg(a)
    SW, SB, STY, STX, SSLOT, SIDX, SY0, SX0 = 4, 5, 6, 7, 8, 9, 10, 11
    SRD = 12; SL, SO = 16, 18; SHI = 20; SOFF = 21; ST = 22
    MV = [24 + 2 * i for i in range(6)]; MI = [60 + 2 * i for i in range(6)]
    MINT = [72, 74]; MIMG = [76, 78]; MP = 80; SCNT = 82
    R = sr(SRD, 4)
    L = VP.get(); T0 = VP.get(); T1 = VP.get(); T2 = VP.get(); T3 = VP.get()
    a.I(f"v_lshrrev_b32 v{T0}, 6, v0"); a.I(f"v_and_b32 v{L}, 63, v0")
    a.I(f"v_readfirstlane_b32 s{SW}, v{T0}")
    a.I(f"s_and_b32 s{ST}, s2, 7"); a.I(f"s_lshr_b32 s{SB}, s{ST}, 2"); a.I(f"s_and_b32 s{ST}, s{ST}, 3")
    a.I(f"s_lshr_b32 s{SIDX}, s2, 3")
    a.I(f"s_lshl_b32 s{SSLOT}, s{ST}, 5"); a.I(f"s_add_u32 s{SSLOT}, s{SSLOT}, s{SIDX}")
    a.I(f"s_lshr_b32 s{STY}, s{SIDX}, 3"); a.I(f"s_lshl_b32 s{ST}, s{ST}, 2"); a.I(f"s_add_u32 s{STY}, s{STY}, s{ST}")
    a.I(f"s_and_b32 s{STX}, s{SIDX}, 7")
    a.I(f"s_lshl_b32 s{SY0}, s{STY}, 2"); a.I(f"s_sub_u32 s{SY0}, s{SY0}, 2")
    a.I(f"s_lshl_b32 s{SX0}, s{STX}, 3"); a.I(f"s_sub_u32 s{SX0}, s{SX0}, 2")
    a.I(f"s_mov_b32 s{SL}, {NLOG2E:#x}"); a.I(f"s_mov_b32 s{SL+1}, {NLOG2E:#x}")
    a.I(f"s_mov_b32 s{SO}, 1.0"); a.I(f"s_mov_b32 s{SO+1}, 1.0"); a.I(f"s_mov_b32 s{SHI}, 0xffff0000")
    AS1 = VP.get(); OC16 = VP.get(); PS = VP.get()
    a.I(f"v_bfe_u32 v{T0}, v{L}, 2, 2"); a.I(f"v_lshlrev_b32 v{T0}, 10, v{T0}")
    a.I(f"v_and_b32 v{T1}, 3, v{L}"); a.I(f"v_lshrrev_b32 v{T2}, 4, v{L}"); a.I(f"v_lshl_add_u32 v{T1}, v{T2}, 2, v{T1}")
    a.I(f"v_lshl_add_u32 v{AS1}, v{T1}, 6, v{T0}")
    a.I(f"v_and_b32 v{OC16}, 15, v0"); a.I(f"v_lshlrev_b32 v{OC16}, 4, v{OC16}")
    a.I(f"v_lshrrev_b32 v{PS}, 4, v0")
    GX = VP.get(6, 1); LX = VP.get(6, 1); LR = VP.get(6, 1); ROW = VP.get(6, 1); COL = VP.get(6, 1)
    a.I(f"s_lshl_b32 s{ST}, s{SB}, 20"); a.I(f"v_mov_b32 v{T3}, 0x40000000")
    for i in range(6):
        a.I(f"v_add_u32 v{COL+i}, {16*i}, v{PS}")
        a.I(f"v_mul_u32_u24 v{ROW+i}, 171, v{COL+i}"); a.I(f"v_lshrrev_b32 v{ROW+i}, 11, v{ROW+i}")
        a.I(f"v_mul_u32_u24 v{T2}, 12, v{ROW+i}"); a.I(f"v_sub_u32 v{COL+i}, v{COL+i}, v{T2}")
        a.I(f"v_add_u32 v{T0}, s{SY0}, v{ROW+i}"); a.I(f"v_add_u32 v{T1}, s{SX0}, v{COL+i}")
        a.I(f"v_lshlrev_b32 v{GX+i}, 14, v{T0}"); a.I(f"v_lshl_add_u32 v{GX+i}, v{T1}, 8, v{GX+i}")
        a.I(f"v_or_b32 v{T0}, v{T0}, v{T1}")
        a.I(f"v_cmp_gt_u32 {sr(MV[i],2)}, 64, v{T0}")
        a.I(f"v_add3_u32 v{GX+i}, v{GX+i}, v{OC16}, s{ST}")
        a.I(f"v_cndmask_b32 v{GX+i}, v{T3}, v{GX+i}, {sr(MV[i],2)}")
    a.I("s_waitcnt lgkmcnt(0)")
    P.stamp()
    a.I(f"s_mov_b32 s{SRD}, s{PWS}"); a.I(f"s_and_b32 s{SRD+1}, s{PWS+1}, 0xffff")
    a.I(f"s_mov_b32 s{SRD+2}, {WS_BYTES}"); a.I(f"s_mov_b32 s{SRD+3}, 0x20000")
    S1 = VP.get(16, 2)
    a.I(f"s_lshl_b32 s{SOFF}, s{SB}, 12"); a.I(f"s_add_u32 s{SOFF}, s{SOFF}, {ST1}")
    for k in range(4): a.V(f"buffer_load_dwordx4 {vr(S1+4*k,4)}, v{AS1}, {R}, s{SOFF} offen offset:{16*k}", "st1")
    G1 = VP.get(4, 2); B1 = VP.get(4, 2)
    a.V(f"global_load_dwordx4 {vr(G1,4)}, v{OC16}, {sr(PG1,2)}", "g1")
    a.V(f"global_load_dwordx4 {vr(B1,4)}, v{OC16}, {sr(PB1,2)}", "b1")
    X = VP.get(24, 2)
    for i in range(6): a.V(f"buffer_load_dwordx4 {vr(X+4*i,4)}, v{GX+i}, {R}, 0 offen", f"x{i}")
    AW = VP.get(); HALF = VP.get(); M32 = VP.get()
    a.I(f"s_mul_i32 s{ST}, s{SW}, 73728"); a.I(f"v_lshl_add_u32 v{AW}, v{L}, 4, s{ST}")
    ACC = VP.get(32, 2)
    if cfg["warm"]:
        a.I(f"s_mul_i32 s{ST}, s{SIDX}, 18432"); a.I(f"s_mul_i32 s{ST+1}, s{SW}, 5120"); a.I(f"s_add_u32 s{ST}, s{ST}, s{ST+1}")
        a.I(f"s_add_u32 s{ST}, s{ST}, {W1T}"); a.I(f"s_add_u32 s{ST+1}, s{ST}, 4096")
        a.I(f"v_lshlrev_b32 v{T0}, 4, v{L}")
        for k in range(5):
            a.V(f"buffer_load_dwordx4 {vr(ACC+4*k,4)}, v{T0}, {R}, s{ST + k // 4} offen offset:{1024*(k%4)}", "wu")
    E = VP.get(16, 2); G2 = VP.get(8, 2); B2 = VP.get(8, 2)
    a.I(f"v_lshrrev_b32 v{HALF}, 5, v{L}"); a.I(f"v_and_b32 v{M32}, 31, v{L}")
    a.I(f"s_lshl_b32 s{ST}, s{SB}, 9"); a.I(f"s_lshl_b32 s{ST+1}, s{SW}, 7"); a.I(f"s_add_u32 s{ST}, s{ST}, s{ST+1}")
    a.I(f"s_add_u32 s{SOFF}, s{ST}, {EMB}")
    a.I(f"v_lshlrev_b32 v{T1}, 4, v{HALF}")
    for q in range(4): a.V(f"buffer_load_dwordx4 {vr(E+4*q,4)}, v{T1}, {R}, s{SOFF} offen offset:{32*q}", "emb")
    a.I(f"s_lshl_b32 s{ST}, s{SW}, 6"); a.I(f"v_lshl_add_u32 v{T2}, v{HALF}, 3, s{ST}")
    for q in range(4): a.V(f"global_load_dwordx2 {vr(G2+2*q,2)}, v{T2}, {sr(PG2,2)} offset:{16*q}", "g2")
    for q in range(4): a.V(f"global_load_dwordx2 {vr(B2+2*q,2)}, v{T2}, {sr(PB2,2)} offset:{16*q}", "b2")
    st = {"n": 0, "s": None}
    def wissue(upto):
        while st["n"] < min(upto, 144):
            n = st["n"]; m = n % 72
            base = W1T + (n // 72) * WSZ + (m // 4) * 4096
            if st["s"] != base: a.I(f"s_mov_b32 s{SOFF}, {base}"); st["s"] = base
            a.V(f"buffer_load_dwordx4 {ar((n % 64) * 4, 4)}, v{AW}, {R}, s{SOFF} offen offset:{(m % 4) * 1024}", f"w{n}")
            st["n"] += 1
    wissue(cfg["w_pro"])
    for i in range(6):
        a.I(f"v_mul_u32_u24 v{LX+i}, {A1R}, v{ROW+i}"); a.I(f"v_mul_u32_u24 v{T0}, {PP}, v{COL+i}")
        a.I(f"v_add3_u32 v{LX+i}, v{LX+i}, v{T0}, v{OC16}")
        a.I(f"v_subrev_u32 v{ROW+i}, 2, v{ROW+i}"); a.I(f"v_subrev_u32 v{COL+i}, 2, v{COL+i}")
        a.I(f"v_lshl_add_u32 v{T0}, v{ROW+i}, 3, v{COL+i}"); a.I(f"v_mul_u32_u24 v{T0}, {PP}, v{T0}")
        a.I(f"v_cmp_gt_u32 vcc, 4, v{ROW+i}"); a.I(f"v_cmp_gt_u32 {sr(MI[i],2)}, 8, v{COL+i}")
        a.I(f"v_add_u32 v{T0}, {XR}, v{T0}"); a.I(f"v_add_u32 v{LR+i}, v{T0}, v{OC16}")
        a.I(f"s_and_b64 {sr(MI[i],2)}, {sr(MI[i],2)}, vcc")
    VP.put(ROW, 6); VP.put(COL, 6); VP.put(GX, 6)
    AB = VP.get(2, 1); AH = VP.get(2, 1)
    for t in range(2):
        if t == 0: a.I(f"v_mov_b32 v{T0}, v{M32}")
        else:
            a.I(f"v_add_u32 v{T0}, 32, v{M32}"); a.I(f"v_cmp_gt_u32 {sr(MP,2)}, 60, v{T0}")
            a.I(f"v_subrev_u32 v{T1}, 16, v{T0}"); a.I(f"v_cndmask_b32 v{T0}, v{T1}, v{T0}, {sr(MP,2)}")
        a.I(f"v_mul_u32_u24 v{T1}, 205, v{T0}"); a.I(f"v_lshrrev_b32 v{T1}, 11, v{T1}")
        a.I(f"v_mul_u32_u24 v{T2}, 10, v{T1}"); a.I(f"v_sub_u32 v{T0}, v{T0}, v{T2}")
        a.I(f"v_mul_u32_u24 v{T2}, {PP}, v{T0}")
        a.I(f"v_mul_u32_u24 v{AB+t}, {A1R}, v{T1}"); a.I(f"v_lshl_add_u32 v{T3}, v{HALF}, 4, v{T2}"); a.I(f"v_add_u32 v{AB+t}, v{AB+t}, v{T3}")
        a.I(f"v_mul_u32_u24 v{AH+t}, {A2R}, v{T1}"); a.I(f"v_lshl_add_u32 v{T3}, v{HALF}, 3, v{T2}"); a.I(f"v_add_u32 v{AH+t}, v{AH+t}, v{T3}")
        a.I(f"s_lshl_b32 s{ST}, s{SW}, 6"); a.I(f"s_add_u32 s{ST}, s{ST}, {A2}"); a.I(f"v_add_u32 v{AH+t}, s{ST}, v{AH+t}")
        a.I(f"v_subrev_u32 v{T2}, 1, v{T1}"); a.I(f"v_subrev_u32 v{T3}, 1, v{T0}")
        a.I(f"v_cmp_gt_u32 vcc, 4, v{T2}"); a.I(f"v_cmp_gt_u32 {sr(MINT[t],2)}, 8, v{T3}")
        a.I(f"s_and_b64 {sr(MINT[t],2)}, {sr(MINT[t],2)}, vcc")
        if t == 1: a.I(f"s_and_b64 {sr(MINT[t],2)}, {sr(MINT[t],2)}, {sr(MP,2)}")
        a.I(f"s_add_u32 s{ST}, s{SY0}, 1"); a.I(f"s_add_u32 s{ST+1}, s{SX0}, 1")
        a.I(f"v_add_u32 v{T1}, s{ST}, v{T1}"); a.I(f"v_add_u32 v{T0}, s{ST+1}, v{T0}"); a.I(f"v_or_b32 v{T0}, v{T0}, v{T1}")
        a.I(f"v_cmp_gt_u32 {sr(MIMG[t],2)}, 64, v{T0}")
    AA = VP.get(); AXR = VP.get(); AO = VP.get(); APL = VP.get(); ID = VP.get(8, 2)
    a.I(f"v_lshrrev_b32 v{T0}, 3, v{M32}"); a.I(f"v_mul_u32_u24 v{T0}, {A2R}, v{T0}")
    a.I(f"v_and_b32 v{T1}, 7, v{M32}"); a.I(f"v_mul_u32_u24 v{T1}, {PP}, v{T1}")
    a.I(f"v_lshlrev_b32 v{T2}, 4, v{HALF}"); a.I(f"v_add3_u32 v{AA}, v{T0}, v{T1}, v{T2}"); a.I(f"v_add_u32 v{AA}, {A2}, v{AA}")
    a.I(f"v_mul_u32_u24 v{T0}, {PP}, v{M32}"); a.I(f"s_lshl_b32 s{ST}, s{SW}, 6"); a.I(f"s_add_u32 s{ST}, s{ST}, {XR}")
    a.I(f"v_add3_u32 v{AXR}, v{T0}, v{T2}, s{ST}")
    a.I(f"s_lshl_b32 s{ST}, s{SB}, 7"); a.I(f"s_lshl_b32 s{ST+1}, s{SW}, 5"); a.I(f"s_add_u32 s{ST}, s{ST}, s{ST+1}")
    a.I(f"s_lshl_b32 s{ST}, s{ST}, 6"); a.I(f"s_lshl_b32 s{ST+1}, s{STY}, 2"); a.I(f"s_add_u32 s{ST}, s{ST}, s{ST+1}")
    a.I(f"s_lshl_b32 s{ST}, s{ST}, 7"); a.I(f"s_lshl_b32 s{ST+1}, s{STX}, 4"); a.I(f"s_add_u32 s{ST}, s{ST}, s{ST+1}")
    a.I(f"v_lshlrev_b32 v{T0}, 13, v{M32}"); a.I(f"v_lshl_add_u32 v{T0}, v{HALF}, 7, v{T0}"); a.I(f"v_add_u32 v{AO}, s{ST}, v{T0}")
    a.I(f"s_lshl_b32 s{ST}, s{SB}, 2"); a.I(f"s_add_u32 s{ST}, s{ST}, s{SW}"); a.I(f"s_lshl_b32 s{ST}, s{ST}, 10"); a.I(f"s_add_u32 s{ST}, s{ST}, {ST2}")
    a.I(f"v_lshl_add_u32 v{APL}, v{L}, 4, s{ST}")
    APUB = VP.get()
    a.I(f"s_lshl_b32 s{ST+1}, s{SSLOT}, 3"); a.I(f"s_add_u32 s{ST}, s{ST}, s{ST+1}"); a.I(f"v_mov_b32 v{APUB}, s{ST}")
    a.I(f"v_and_b32 v{T0}, 1, v{M32}"); a.I(f"v_lshlrev_b32 v{T0}, 4, v{T0}"); a.I(f"v_mov_b32 v{T1}, 0x3f80"); a.I(f"v_lshlrev_b32 v{T0}, v{T0}, v{T1}")
    a.I(f"v_lshlrev_b32 v{T1}, 3, v{HALF}"); a.I(f"v_sub_u32 v{T1}, v{M32}, v{T1}"); a.I(f"v_ashrrev_i32 v{T1}, 1, v{T1}")
    for s_ in range(2):
        for q in range(4):
            a.I(f"v_cmp_eq_u32 vcc, {8*s_+q}, v{T1}"); a.I(f"v_cndmask_b32 v{ID+4*s_+q}, 0, v{T0}, vcc")
    a.wait(vm="st1")
    P.stamp()
    for k in (1, 3, 5, 7): a.I(f"v_pk_add_f32 {vr(S1+4*(k//2),2)}, {vr(S1+4*(k//2),2)}, {vr(S1+2*k,2)}")
    a.I(f"v_pk_add_f32 {vr(S1,2)}, {vr(S1,2)}, {vr(S1+4,2)}"); a.I(f"v_pk_add_f32 {vr(S1+8,2)}, {vr(S1+8,2)}, {vr(S1+12,2)}")
    a.I(f"v_pk_add_f32 {vr(S1,2)}, {vr(S1,2)}, {vr(S1+8,2)}")
    allreduce(a, [S1, S1 + 1], [S1 + 2, S1 + 3], quad_only=True)
    MR = VP.get(4, 2)
    mean_rstd(a, S1, S1 + 1, MR, T0)
    SC = VP.get(8, 2); SH = VP.get(8, 2)
    a.wait(vm="b1")
    unpack(a, SC, G1, 4, SHI); unpack(a, SH, B1, 4, SHI)
    scale_shift(a, SC, SH, 4, MR)
    VP.put(S1, 16); VP.put(G1, 4); VP.put(B1, 4)
    V = VP.get(8, 2); Z = VP.get(8, 2); O = VP.get(4, 2)
    for i in range(6):
        a.wait(vm=f"x{i}")
        a.I(f"s_mov_b64 exec, {sr(MI[i],2)}")
        a.D(f"ds_write_b128 v{LR+i}, {vr(X+4*i,4)}")
        a.I("s_mov_b64 exec, -1")
        unpack(a, V, X + 4 * i, 4, SHI)
        for k in range(4): a.I(f"v_pk_fma_f32 {vr(V+2*k,2)}, {vr(V+2*k,2)}, {vr(SC+2*k,2)}, {vr(SH+2*k,2)}")
        silu_pairs(a, V, Z, 4, SL, SO)
        for k in range(4): a.I(f"v_cvt_pk_bf16_f32 v{O+k}, v{V+2*k}, v{V+2*k+1}")
        for k in range(4): a.I(f"v_cndmask_b32 v{O+k}, 0, v{O+k}, {sr(MV[i],2)}")
        a.D(f"ds_write_b128 v{LX+i}, {vr(O,4)}")
        wissue(cfg["w_pro"] + cfg["w_act"] * (i + 1))
    a.wait(lg="all")
    P.stamp()
    a.I("s_barrier")
    VP.put(X, 24); VP.put(V, 8); VP.put(Z, 8); VP.put(O, 4); VP.put(SC, 8); VP.put(SH, 8); VP.put(LX, 6); VP.put(LR, 6)
    NB = 4; BR = VP.get(NB * 8, 2)
    def boff(n): j, tp = divmod(n, 9); return (tp // 3) * A1R + (tp % 3) * PP + j * 32
    def bread(n):
        for t in range(2): a.D(f"ds_read_b128 {vr(BR+(n%NB)*8+4*t,4)}, v{AB+t} offset:{boff(n)}", f"b{n}")
    LA = 2
    for n in range(LA): bread(n)
    for n in range(72):
        if n + LA < 72: bread(n + LA)
        a.wait(vm=f"w{n}", lg=f"b{n}")
        for t in range(2):
            c = vr(E, 16) if n == 0 else vr(ACC + 16 * t, 16)
            a.I(f"v_mfma_f32_32x32x16_bf16 {vr(ACC+16*t,16)}, {ar((n%64)*4,4)}, {vr(BR+(n%NB)*8+4*t,4)}, {c}")
        tgt = cfg["w_conv1"](n, st["n"])
        assert tgt <= n + 64
        wissue(tgt)
    P.stamp()
    VP.put(BR, NB * 8)
    SS = VP.get(8, 2)
    for t in range(2):
        A_ = ACC + 16 * t
        a.I(f"v_pk_add_f32 {vr(SS+4*t,2)}, {vr(A_,2)}, {vr(A_+2,2)}"); a.I(f"v_pk_mul_f32 {vr(SS+4*t+2,2)}, {vr(A_,2)}, {vr(A_,2)}")
    for k in range(1, 8):
        for t in range(2):
            A_ = ACC + 16 * t
            if k > 1: a.I(f"v_pk_add_f32 {vr(SS+4*t,2)}, {vr(SS+4*t,2)}, {vr(A_+2*k,2)}")
            a.I(f"v_pk_fma_f32 {vr(SS+4*t+2,2)}, {vr(A_+2*k,2)}, {vr(A_+2*k,2)}, {vr(SS+4*t+2,2)}")
    for t in range(2):
        a.I(f"v_add_f32 v{SS+4*t}, v{SS+4*t}, v{SS+4*t+1}"); a.I(f"v_add_f32 v{SS+4*t+2}, v{SS+4*t+2}, v{SS+4*t+3}")
    for t in range(2):
        a.I(f"v_cndmask_b32 v{SS+4*t}, 0, v{SS+4*t}, {sr(MINT[t],2)}"); a.I(f"v_cndmask_b32 v{SS+4*t+2}, 0, v{SS+4*t+2}, {sr(MINT[t],2)}")
    a.I(f"v_add_f32 v{SS}, v{SS}, v{SS+4}"); a.I(f"v_add_f32 v{SS+1}, v{SS+2}, v{SS+6}")
    allreduce(a, [SS, SS + 1], [SS + 2, SS + 3])
    a.I(f"v_cmp_eq_u32 vcc, -1, v{SS+1}"); a.I(f"v_mov_b32 v{SS+2}, 0x7fc00000"); a.I(f"v_cndmask_b32 v{SS+1}, v{SS+1}, v{SS+2}, vcc")
    a.I("s_mov_b64 exec, 1")
    a.V(f"buffer_store_dwordx2 {vr(SS,2)}, v{APUB}, {R}, 0 offen sc0 sc1", "pub")
    a.I("s_mov_b64 exec, -1")
    P.stamp()
    wissue(72 + 64)
    SC2 = VP.get(16, 2); SH2 = VP.get(16, 2)
    unpack(a, SC2, G2, 8, SHI); unpack(a, SH2, B2, 8, SHI)
    PL = VP.get(4, 2)
    a.I(f"s_mov_b32 s{SCNT}, {cfg['spin']}")
    a.fence()
    a.label("K2_POLL")
    a.I(f"buffer_load_dwordx4 {vr(PL,4)}, v{APL}, {R}, 0 offen sc0 sc1")
    a.I("s_waitcnt vmcnt(0)")
    a.I(f"v_cmp_ne_u32 vcc, -1, v{PL+1}"); a.I(f"v_cmp_ne_u32 {sr(ST,2)}, -1, v{PL+3}")
    a.I(f"s_sub_u32 s{SCNT}, s{SCNT}, 1"); a.I("s_cbranch_scc1 K2_GO")
    a.I(f"s_and_b64 vcc, vcc, {sr(ST,2)}"); a.I("s_cmp_eq_u64 vcc, -1"); a.I("s_cbranch_scc0 K2_POLL")
    a.label("K2_GO")
    a.vm = []
    P.stamp()
    a.I(f"v_pk_add_f32 {vr(PL,2)}, {vr(PL,2)}, {vr(PL+2,2)}")
    allreduce(a, [PL, PL + 1], [PL + 2, PL + 3])
    mean_rstd(a, PL, PL + 1, MR, T0)
    scale_shift(a, SC2, SH2, 8, MR)
    Z = VP.get(16, 2); O = VP.get(16, 2)
    for t in range(2):
        A_ = ACC + 16 * t
        for k in range(8): a.I(f"v_pk_fma_f32 {vr(A_+2*k,2)}, {vr(A_+2*k,2)}, {vr(SC2+2*k,2)}, {vr(SH2+2*k,2)}")
        silu_pairs(a, A_, Z, 8, SL, SO)
        for k in range(8): a.I(f"v_cvt_pk_bf16_f32 v{O+8*t+k}, v{A_+2*k}, v{A_+2*k+1}")
        for k in range(8): a.I(f"v_cndmask_b32 v{O+8*t+k}, 0, v{O+8*t+k}, {sr(MIMG[t],2)}")
        if t == 1: a.I(f"s_mov_b64 exec, {sr(MP,2)}")
        for q in range(4): a.D(f"ds_write_b64 v{AH+t}, {vr(O+8*t+2*q,2)} offset:{16*q}")
        if t == 1: a.I("s_mov_b64 exec, -1")
    NB2 = 6; BR = VP.get(NB2 * 4, 2); OA = VP.get(16, 2)
    for s_ in range(2): a.D(f"ds_read_b128 {vr(BR+4*(4+s_),4)}, v{AXR} offset:{32*s_}", f"xr{s_}")
    a.wait(lg="all")
    P.stamp()
    a.I("s_barrier")
    def aoff(n): j, tp = divmod(n, 9); return (tp // 3) * A2R + (tp % 3) * PP + j * 32
    def aread(n): a.D(f"ds_read_b128 {vr(BR+(n%NB2)*4,4)}, v{AA} offset:{aoff(n)}", f"a{n}")
    LA = 3
    for n in range(LA): aread(n)
    a.I(f"v_mfma_f32_32x32x16_bf16 {vr(OA,16)}, {vr(BR+16,4)}, {vr(ID,4)}, 0")
    a.I(f"v_mfma_f32_32x32x16_bf16 {vr(OA,16)}, {vr(BR+20,4)}, {vr(ID+4,4)}, {vr(OA,16)}")
    for n in range(72):
        if n + LA < 72: aread(n + LA)
        a.wait(vm=f"w{72+n}", lg=f"a{n}")
        a.I(f"v_mfma_f32_32x32x16_bf16 {vr(OA,16)}, {vr(BR+(n%NB2)*4,4)}, {ar(((72+n)%64)*4,4)}, {vr(OA,16)}")
        wissue(min(144, 72 + n + 63))
    P.stamp()
    for k in range(8): a.I(f"v_cvt_pk_bf16_f32 v{O+k}, v{OA+2*k}, v{OA+2*k+1}")
    for k in range(2):
        a.I(f"v_permlane32_swap_b32 v{O+4*k}, v{O+4*k+2}"); a.I(f"v_permlane32_swap_b32 v{O+4*k+1}, v{O+4*k+3}")
    for k in range(2): a.V(f"global_store_dwordx4 v{AO}, {vr(O+4*k,4)}, {sr(POUT,2)} offset:{256*k}")
    if prof:
        a.wait(vm="all"); P.stamp(); P.dump(SW, 1)
    a.label("K2_END")
    a.I("s_endpgm")
    print("K2 vgpr high water", VP.hw, "nops", a.nops, file=sys.stderr)
    return a.text() + descriptor(name, 512, 256)

HDR = open("standalone__adm_resblock__diffusion.s.ref").read().split("; Override launch")[0]
def build_all(prof=False, cfg=None):
    c = dict(warm=True, w_pro=26, w_act=4, spin=1 << 20,
             w_conv1=lambda n, cur: min(n + 62, 72) if n < 12 else (min(72 + (n - 12), 72 + 28)))
    c.update(cfg or {})
    s = HDR
    s += "; @launch kernel=prep_kernel grid=(280,1,1) block=(256,1,1) lds=8192\n"
    s += f"; @launch kernel=main_kernel grid=(256,1,1) block=(256,1,1) lds={LDS2}\n"
    s += '.amdgcn_target "amdgcn-amd-amdhsa--gfx950"\n'
    s += gen_k1(prof) + gen_k2(prof, c)
    return s
if __name__ == "__main__":
    prof = "prof" in sys.argv
    out = sys.argv[1]
    txt = build_all(prof); open(out, "w").write(txt)
```

```python
from gen import *
from gen2 import silu_pairs, mean_rstd, scale_shift, unpack
import gen
NAME = "standalone__adm_resblock__diffusion_kernel"
ST1 = 0x290000; JT = 0x291000; EPOCH = 0x291400; EMB = 0x291800; ST2 = 0x292000
RAW = 8 * A1R + 16; RP = 200
A2 = 8 * A1R
LDS3 = RAW + 128 * RP + 16
assert LDS3 >= A2 + 6 * A2R
K_LO = 0x9E3779B9; K_HI = 0x7F4A7C15
def cost(t):
    m = t.split()[0]
    if m.startswith("v_mfma"): return 32
    if any(m.startswith(x) for x in TRANS): return 16
    if m.startswith("s_nop"): return 4 * (int(t.split()[1]) + 1) // 2
    if m.startswith("s_waitcnt"): return 0
    if m.startswith("ds_"): return 8
    return 4
class Asm2(Asm):
    def __init__(s):
        super().__init__(); s.bg = []; s.on = False; s.acc = 0; s.period = 64; s.inbg = False; s.consumed = 0; s.restore = None
    def can(s):
        if not s.bg or len(s.vm) > 61: return False
        fr = s.bg[0][2]
        return fr is None or fr < s.consumed + 64
    def issue(s):
        pre, text, fr, tag = s.bg.pop(0)
        s.inbg = True
        if pre: Asm.I(s, pre)
        Asm.I(s, text); s.vm.append(tag); s.inbg = False
    def I(s, text):
        Asm.I(s, text)
        if s.on and not s.inbg:
            s.acc += cost(text)
            if s.acc >= s.period and s.can():
                s.issue(); s.acc = min(s.acc - s.period, s.period // 2)
    def burst(s, n):
        for _ in range(n):
            if s.can(): s.issue()
        s.acc = 0
    def wait(s, vm=None, lg=None):
        while vm is not None and vm != "all" and any(b[3] == vm for b in s.bg):
            assert s.can(), ("background queue blocked", vm); s.issue()
        on = s.on; s.on = False
        Asm.wait(s, vm, lg); s.on = on
    def V(s, text, tag=None):
        on = s.on; s.on = False
        Asm.I(s, text); s.vm.append(tag); s.on = on
    def reset(s):
        s.hist = []; s.vm = []; s.lg = []

def gen_fused(prof, cfg):
    a = Asm2(); header(a, NAME)
    P = Prof(a, prof)
    VP = Pool(1, 256, "v")
    SW, SB, STY, STX, SSLOT, SIDX, SY0, SX0 = 4, 5, 6, 7, 8, 9, 10, 11
    SRD = 12; SL, SO = 16, 18; SHI = 20; SOFF = 21; ST = 22
    MV = [24 + 2 * i for i in range(6)]
    SRX = 60; SN = 64; SJ = 66; SWO = 83
    MINT = [72, 74]; MIMG = [76, 78]; MP = 80; SCNT = 82
    R = sr(SRD, 4); RX = sr(SRX, 4); WS = sr(PWS, 2)
    P.rt(0); P.stamp()
    a.I("s_cmp_ge_u32 s2, 256"); a.I("s_cbranch_scc1 F_END")
    load_kernarg(a)
    L = VP.get(); T0 = VP.get(); T1 = VP.get(); T2 = VP.get(); T3 = VP.get()
    a.I(f"v_lshrrev_b32 v{T0}, 6, v0"); a.I(f"v_and_b32 v{L}, 63, v0")
    a.I(f"v_readfirstlane_b32 s{SW}, v{T0}")
    a.I(f"s_and_b32 s{ST}, s2, 7"); a.I(f"s_lshr_b32 s{SB}, s{ST}, 2"); a.I(f"s_and_b32 s{ST}, s{ST}, 3")
    a.I(f"s_lshr_b32 s{SIDX}, s2, 3")
    a.I(f"s_lshl_b32 s{SSLOT}, s{ST}, 5"); a.I(f"s_add_u32 s{SSLOT}, s{SSLOT}, s{SIDX}")
    a.I(f"s_lshr_b32 s{STY}, s{SIDX}, 3"); a.I(f"s_lshl_b32 s{ST}, s{ST}, 2"); a.I(f"s_add_u32 s{STY}, s{STY}, s{ST}")
    a.I(f"s_and_b32 s{STX}, s{SIDX}, 7")
    a.I(f"s_lshl_b32 s{SY0}, s{STY}, 2"); a.I(f"s_sub_u32 s{SY0}, s{SY0}, 2")
    a.I(f"s_lshl_b32 s{SX0}, s{STX}, 3"); a.I(f"s_sub_u32 s{SX0}, s{SX0}, 2")
    HALF = VP.get(); M32 = VP.get()
    a.I(f"v_lshrrev_b32 v{HALF}, 5, v{L}"); a.I(f"v_and_b32 v{M32}, 31, v{L}")
    GX = VP.get(4, 1); AR = VP.get(); LW = VP.get()
    CH = SJ
    a.I(f"s_lshl_b32 s{CH}, s{SB}, 7"); a.I(f"s_lshl_b32 s{ST}, s{SW}, 5"); a.I(f"s_add_u32 s{CH}, s{CH}, s{ST}")
    a.I(f"s_lshl_b32 s{ST}, s{STX}, 4"); a.I(f"s_sub_u32 s{ST}, s{ST}, 4"); a.I(f"s_mov_b32 s{ST+1}, 0")
    a.I(f"s_cmp_eq_u32 s{STX}, 0"); a.I(f"s_cselect_b32 s{ST}, 0, s{ST}"); a.I(f"s_cselect_b32 s{ST+1}, 4, s{ST+1}")
    a.I(f"s_cmp_eq_u32 s{STX}, 7"); a.I(f"s_cselect_b32 s{ST}, 104, s{ST}"); a.I(f"s_cselect_b32 s{ST+1}, -4, s{ST+1}")
    a.I(f"s_lshl_b32 s{SOFF}, s{CH}, 13"); a.I(f"s_add_u32 s{SOFF}, s{SOFF}, s{ST}")
    a.I(f"v_lshl_add_u32 v{T0}, v{M32}, 13, s{SOFF}"); a.I(f"v_add_u32 v{T1}, s{SY0}, v{HALF}")
    a.I(f"v_mov_b32 v{T3}, 0x40000000")
    for k in range(4):
        if k: a.I(f"v_add_u32 v{T1}, 2, v{T1}")
        a.I(f"v_cmp_gt_u32 vcc, 64, v{T1}"); a.I(f"v_lshl_add_u32 v{GX+k}, v{T1}, 7, v{T0}")
        a.I(f"v_cndmask_b32 v{GX+k}, v{T3}, v{GX+k}, vcc")
    a.I(f"s_mul_i32 s{SOFF}, s{SW}, {32*RP}"); a.I(f"s_add_u32 s{SOFF}, s{SOFF}, s{ST+1}"); a.I(f"s_add_u32 s{SOFF}, s{SOFF}, {RAW}")
    a.I(f"v_mul_u32_u24 v{T0}, {RP}, v{M32}"); a.I(f"v_mul_u32_u24 v{T1}, 24, v{HALF}"); a.I(f"v_add3_u32 v{LW}, v{T0}, v{T1}, s{SOFF}")
    a.I(f"s_lshl_b32 s{ST}, s{CH}, 13"); a.I(f"s_lshl_b32 s{ST+1}, s{STY}, 9"); a.I(f"s_add_u32 s{ST}, s{ST}, s{ST+1}")
    a.I(f"s_lshl_b32 s{ST+1}, s{STX}, 4"); a.I(f"s_add_u32 s{ST}, s{ST}, s{ST+1}")
    a.I(f"v_lshl_add_u32 v{T0}, v{M32}, 13, s{ST}"); a.I(f"v_lshl_add_u32 v{AR}, v{HALF}, 3, v{T0}")
    AO = VP.get(); a.I(f"v_lshl_add_u32 v{AO}, v{HALF}, 7, v{T0}")
    OC16 = VP.get()
    a.I(f"v_lshrrev_b32 v{T0}, 4, v{L}"); a.I(f"s_lshl_b32 s{ST}, s{SW}, 6"); a.I(f"v_lshl_add_u32 v{OC16}, v{T0}, 4, s{ST}")
    EP = VP.get(2, 2); X4 = VP.get(16, 2); X2 = VP.get(8, 2); XRES = VP.get(8, 2); G1 = VP.get(4, 2); B1 = VP.get(4, 2)
    a.I(f"v_mov_b32 v{T2}, {EPOCH}")
    a.I("s_waitcnt lgkmcnt(0)")
    P.stamp()
    a.I(f"s_mov_b32 s{SRD}, s{PWS}"); a.I(f"s_and_b32 s{SRD+1}, s{PWS+1}, 0xffff")
    a.I(f"s_mov_b32 s{SRD+2}, {WS_BYTES}"); a.I(f"s_mov_b32 s{SRD+3}, 0x20000")
    a.I(f"s_mov_b32 s{SRX}, s{PX}"); a.I(f"s_and_b32 s{SRX+1}, s{PX+1}, 0xffff")
    a.I(f"s_mov_b32 s{SRX+2}, 0x200000"); a.I(f"s_mov_b32 s{SRX+3}, 0x20000")
    a.V(f"global_load_dwordx2 {vr(EP,2)}, v{T2}, {WS} sc0 sc1", "ep")
    def tile_loads():
        for k in range(4):
            a.V(f"buffer_load_dwordx4 {vr(X4+4*k,4)}, v{GX+k}, {RX}, 0 offen", "xt")
            a.V(f"buffer_load_dwordx2 {vr(X2+2*k,2)}, v{GX+k}, {RX}, 0 offen offset:16", "xt")
        for yy in range(4): a.V(f"buffer_load_dwordx2 {vr(XRES+2*yy,2)}, v{AR}, {RX}, 0 offen offset:{128*yy}", "xr")
        a.V(f"global_load_dwordx4 {vr(G1,4)}, v{OC16}, {sr(PG1,2)}", "g1")
        a.V(f"global_load_dwordx4 {vr(B1,4)}, v{OC16}, {sr(PB1,2)}", "b1")
    def nonce():
        a.wait(vm="ep")
        a.I(f"v_readfirstlane_b32 s{SN}, v{EP}"); a.I(f"v_readfirstlane_b32 s{SN+1}, v{EP+1}")
        a.I(f"s_add_u32 s{SN}, s{SN}, {K_LO:#x}"); a.I(f"s_add_u32 s{SN+1}, s{SN+1}, {K_HI:#x}")
    J = 128
    a.I("s_cmp_ge_u32 s2, 88"); a.I("s_cbranch_scc1 F_NOJOB")
    a.I("s_cmp_lt_u32 s2, 16"); a.I("s_cbranch_scc1 F_JW")
    a.I("s_cmp_lt_u32 s2, 24"); a.I("s_cbranch_scc1 F_JE")
    a.I(f"s_sub_u32 s{SJ+1}, s2, 24"); a.I(f"s_lshl_b32 s{SJ+1}, s{SJ+1}, 2"); a.I(f"s_add_u32 s{SJ+1}, s{SJ+1}, s{SW}")
    a.I(f"s_lshl_b32 s{SJ+2}, s{SJ+1}, 13")
    a.I(f"v_lshl_add_u32 v{J}, v{L}, 4, s{SJ+2}"); a.I(f"v_add_u32 v{J+1}, 0x1000, v{J}")
    for k in range(8): a.V(f"global_load_dwordx4 {vr(J+8+4*k,4)}, v{J+k//4}, {sr(PX,2)} offset:{1024*(k%4)}", f"p{k}")
    tile_loads()
    a.I(f"s_lshl_b32 s{SJ+2}, s{SJ+1}, 4"); a.I(f"s_add_u32 s{SJ+2}, s{SJ+2}, {ST1}"); a.I(f"s_mov_b32 s{SJ+3}, 0x3f803f80")
    for k in range(4): a.I(f"v_mov_b32 v{J+2+k}, 0")
    nonce()
    for k in range(8):
        a.wait(vm=f"p{k}")
        for q in range(4):
            a.I(f"v_dot2_f32_bf16 v{J+2+(q&1)}, v{J+8+4*k+q}, s{SJ+3}, v{J+2+(q&1)}")
            a.I(f"v_dot2_f32_bf16 v{J+4+(q&1)}, v{J+8+4*k+q}, v{J+8+4*k+q}, v{J+4+(q&1)}")
    a.I(f"v_add_f32 v{J+2}, v{J+2}, v{J+3}"); a.I(f"v_add_f32 v{J+3}, v{J+4}, v{J+5}")
    allreduce(a, [J + 2, J + 3], [J + 6, J + 7])
    a.I(f"v_mov_b32 v{J+4}, s{SN}"); a.I(f"v_mov_b32 v{J+5}, s{SN+1}"); a.I(f"v_mov_b32 v{J}, s{SJ+2}")
    a.I("s_mov_b64 exec, 1")
    a.V(f"global_store_dwordx4 v{J}, {vr(J+2,4)}, {WS} sc0 sc1")
    a.I("s_mov_b64 exec, -1")
    a.I("s_waitcnt vmcnt(0)")
    a.I("s_branch F_COMMON")
    a.reset(); a.vm = ["ep"]
    a.label("F_JW")
    s5, s6, s7, s8, s9 = SJ + 1, SJ + 2, SJ + 3, SJ + 4, SJ + 5
    a.I(f"s_lshl_b32 s{s5}, s2, 2"); a.I(f"s_add_u32 s{s5}, s{s5}, s{SW}")
    a.I(f"s_lshr_b32 s{s6}, s{s5}, 5"); a.I(f"s_bfe_u32 s{s7}, s{s5}, 0x20003"); a.I(f"s_and_b32 s{s8}, s{s5}, 7")
    a.I(f"s_lshl_b32 s{s9}, s{s7}, 5"); a.I(f"v_add_u32 v{J}, s{s9}, v{M32}")
    a.I(f"s_movk_i32 s{s9}, 2304"); a.I(f"v_mul_lo_u32 v{J}, v{J}, s{s9}")
    a.I(f"s_lshl_b32 s{s9}, s{s8}, 1"); a.I(f"v_add_u32 v{J+1}, s{s9}, v{HALF}")
    a.I(f"v_mul_u32_u24 v{J+1}, 144, v{J+1}"); a.I(f"v_add_u32 v{J}, v{J}, v{J+1}")
    a.I(f"s_cmp_eq_u32 s{s6}, 0")
    a.I(f"s_cselect_b32 s{MINT[0]}, s{PW1}, s{PW2}"); a.I(f"s_cselect_b32 s{MINT[0]+1}, s{PW1+1}, s{PW2+1}")
    for k in range(9): a.V(f"global_load_dwordx4 {vr(J+8+4*k,4)}, v{J}, {sr(MINT[0],2)} offset:{16*k}", "w")
    tile_loads()
    a.I(f"s_lshl_b32 s{s9}, s{s7}, 3"); a.I(f"s_add_u32 s{s9}, s{s9}, s{s8}"); a.I(f"s_mul_i32 s{s9}, s{s9}, 9216")
    a.I(f"s_mul_i32 s{s6}, s{s6}, {WSZ}"); a.I(f"s_add_u32 s{s9}, s{s9}, s{s6}"); a.I(f"s_add_u32 s{s9}, s{s9}, {W1T}")
    a.I(f"v_lshl_add_u32 v{J+2}, v{L}, 4, s{s9}"); a.I(f"v_add_u32 v{J+3}, 0x1000, v{J+2}"); a.I(f"v_add_u32 v{J+4}, 0x2000, v{J+2}")
    a.I(f"s_mov_b32 s{s6}, 0x07060100"); a.I(f"s_mov_b32 s{s7}, 0x05040302")
    a.I(f"s_lshl_b32 s{s5}, s{s5}, 3"); a.I(f"s_add_u32 s{s5}, s{s5}, {JT}")
    a.wait(vm="w")
    for t in range(9):
        o = J + 48 + 4 * (t % 3)
        for q in range(4):
            lo = J + 8 + 9 * q + t // 2; hi = J + 8 + 9 * q + (9 + t) // 2
            a.I(f"v_perm_b32 v{o+q}, v{hi}, v{lo}, s{s6 + (t & 1)}")
        a.V(f"global_store_dwordx4 v{J + 2 + t // 4}, {vr(o,4)}, {WS} offset:{(t % 4) * 1024} sc0 sc1")
    nonce()
    a.I(f"v_mov_b32 v{J}, s{s5}"); a.I(f"v_mov_b32 v{J+6}, s{SN}"); a.I(f"v_mov_b32 v{J+7}, s{SN+1}")
    a.I("s_waitcnt vmcnt(0)")
    a.I("s_mov_b64 exec, 1")
    a.V(f"global_store_dwordx2 v{J}, {vr(J+6,2)}, {WS} sc0 sc1")
    a.I("s_mov_b64 exec, -1")
    a.I("s_waitcnt vmcnt(0)")
    a.I("s_branch F_COMMON")
    a.reset(); a.vm = ["ep"]
    a.label("F_JE")
    a.I(f"s_sub_u32 s{s5}, s2, 16"); a.I(f"s_lshl_b32 s{s5}, s{s5}, 2"); a.I(f"s_add_u32 s{s5}, s{s5}, s{SW}")
    a.I(f"s_lshr_b32 s{s6}, s{s5}, 4"); a.I(f"s_and_b32 s{s7}, s{s5}, 15")
    a.I(f"s_mul_i32 s{s8}, s{s6}, 768"); a.I(f"v_lshl_add_u32 v{J}, v{L}, 1, s{s8}")
    a.I(f"s_lshl_b32 s{s8}, s{s7}, 4"); a.I(f"v_lshl_add_u32 v{J+1}, v{L}, 8, s{s8}")
    for i in range(1, 6): a.I(f"v_add_u32 v{J+1+i}, {i*16384}, v{J+1}")
    for i in range(6): a.V(f"global_load_ushort v{J+8+i}, v{J}, {sr(PT,2)} offset:{128*i}", f"t{i}")
    for i in range(6): a.V(f"global_load_dwordx4 {vr(J+16+4*i,4)}, v{J+1+i}, {sr(PWE,2)}", f"e{i}")
    tile_loads()
    a.I(f"s_lshl_b32 s{s8}, s{s6}, 9"); a.I(f"s_lshl_b32 s{s9}, s{s7}, 5"); a.I(f"s_add_u32 s{s8}, s{s8}, s{s9}"); a.I(f"s_add_u32 s{s8}, s{s8}, {EMB}")
    a.I(f"s_lshl_b32 s{s5}, s{s5}, 3"); a.I(f"s_add_u32 s{s5}, s{s5}, {JT + 512}")
    for k in range(8): a.I(f"v_mov_b32 v{J+40+k}, 0")
    a.I(f"s_mov_b32 s{s6}, {NLOG2E:#x}"); a.I(f"s_mov_b32 s{s7}, 0xffff0000")
    a.wait(vm="t5")
    u = J + 8; z = J + 50
    for i in range(6): a.I(f"v_lshlrev_b32 v{u+i}, 16, v{u+i}")
    for i in range(6): a.I(f"v_mul_f32 v{z+i}, s{s6}, v{u+i}")
    for i in range(6): a.I(f"v_exp_f32 v{z+i}, v{z+i}")
    for i in range(6): a.I(f"v_add_f32 v{z+i}, 1.0, v{z+i}")
    for i in range(6): a.I(f"v_rcp_f32 v{z+i}, v{z+i}")
    for i in range(6): a.I(f"v_mul_f32 v{u+i}, v{u+i}, v{z+i}")
    for i in range(6):
        a.wait(vm=f"e{i}")
        for k in range(4):
            a.I(f"v_lshlrev_b32 v{z+6}, 16, v{J+16+4*i+k}"); a.I(f"v_and_b32 v{z+7}, s{s7}, v{J+16+4*i+k}")
            a.I(f"v_fmac_f32 v{J+40+2*k}, v{u+i}, v{z+6}"); a.I(f"v_fmac_f32 v{J+41+2*k}, v{u+i}, v{z+7}")
    allreduce(a, list(range(J + 40, J + 48)), list(range(z, z + 8)))
    nonce()
    a.I(f"v_mov_b32 v{J}, s{s8}"); a.I(f"v_mov_b32 v{J+1}, s{s5}"); a.I(f"v_mov_b32 v{J+6}, s{SN}"); a.I(f"v_mov_b32 v{J+7}, s{SN+1}")
    a.I("s_mov_b64 exec, 1")
    a.V(f"global_store_dwordx4 v{J}, {vr(J+40,4)}, {WS} sc0 sc1")
    a.V(f"global_store_dwordx4 v{J}, {vr(J+44,4)}, {WS} offset:16 sc0 sc1")
    a.I("s_waitcnt vmcnt(0)")
    a.V(f"global_store_dwordx2 v{J+1}, {vr(J+6,2)}, {WS} sc0 sc1")
    a.I("s_mov_b64 exec, -1")
    a.I("s_waitcnt vmcnt(0)")
    a.I("s_branch F_COMMON")
    a.reset(); a.vm = ["ep"]
    a.label("F_NOJOB")
    tile_loads()
    nonce()
    a.fence()
    a.label("F_COMMON")
    a.hist = []
    a.I(f"s_mov_b32 s{SL}, {NLOG2E:#x}"); a.I(f"s_mov_b32 s{SL+1}, {NLOG2E:#x}")
    a.I(f"s_mov_b32 s{SO}, 1.0"); a.I(f"s_mov_b32 s{SO+1}, 1.0"); a.I(f"s_mov_b32 s{SHI}, 0xffff0000")
    LX = VP.get(6, 1); TR = VP.get(); AS1 = VP.get(); AJT = VP.get()
    a.I(f"v_and_b32 v{T3}, 15, v{L}")
    for i in range(6):
        a.I(f"v_add_u32 v{T0}, {16*i}, v{T3}")
        a.I(f"v_mul_u32_u24 v{T1}, 171, v{T0}"); a.I(f"v_lshrrev_b32 v{T1}, 11, v{T1}")
        a.I(f"v_mul_u32_u24 v{T2}, 12, v{T1}"); a.I(f"v_sub_u32 v{T0}, v{T0}, v{T2}")
        a.I(f"v_mul_u32_u24 v{LX+i}, {A1R}, v{T1}"); a.I(f"v_mul_u32_u24 v{T2}, {PP}, v{T0}")
        a.I(f"v_add3_u32 v{LX+i}, v{LX+i}, v{T2}, v{OC16}")
        a.I(f"v_add_u32 v{T1}, s{SY0}, v{T1}"); a.I(f"v_add_u32 v{T0}, s{SX0}, v{T0}"); a.I(f"v_or_b32 v{T0}, v{T0}, v{T1}")
        a.I(f"v_cmp_gt_u32 {sr(MV[i],2)}, 64, v{T0}")
    a.I(f"v_lshrrev_b32 v{T0}, 4, v{L}"); a.I(f"v_bfe_u32 v{T1}, v{L}, 2, 2"); a.I(f"v_lshl_add_u32 v{T0}, v{T0}, 3, v{T1}")
    a.I(f"v_mul_u32_u24 v{T0}, {RP}, v{T0}"); a.I(f"v_and_b32 v{T1}, 3, v{L}"); a.I(f"v_lshl_add_u32 v{T0}, v{T1}, 3, v{T0}")
    a.I(f"s_mul_i32 s{ST}, s{SW}, {32*RP}"); a.I(f"s_add_u32 s{ST}, s{ST}, {RAW}"); a.I(f"v_add_u32 v{TR}, s{ST}, v{T0}")
    a.I(f"s_lshl_b32 s{ST}, s{CH}, 4"); a.I(f"s_add_u32 s{ST}, s{ST}, {ST1}"); a.I(f"v_lshl_add_u32 v{AS1}, v{M32}, 4, s{ST}")
    a.I(f"v_min_u32 v{T0}, 47, v{L}"); a.I(f"v_lshlrev_b32 v{T0}, 4, v{T0}"); a.I(f"v_add_u32 v{AJT}, {JT}, v{T0}")
    AW = VP.get()
    a.I(f"s_mul_i32 s{ST}, s{SW}, 73728"); a.I(f"v_lshl_add_u32 v{AW}, v{L}, 4, s{ST}")
    a.vm = ["xt"] * 8 + ["xr"] * 4 + ["g1", "b1"]
    a.wait(vm="xt")
    for k in range(4):
        a.D(f"ds_write2_b32 v{LW}, v{X4+4*k}, v{X4+4*k+1} offset0:{12*k} offset1:{12*k+1}")
        a.D(f"ds_write2_b32 v{LW}, v{X4+4*k+2}, v{X4+4*k+3} offset0:{12*k+2} offset1:{12*k+3}")
        a.D(f"ds_write2_b32 v{LW}, v{X2+2*k}, v{X2+2*k+1} offset0:{12*k+4} offset1:{12*k+5}")
    a.wait(lg="all")
    VP.put(X4, 16); VP.put(X2, 8); VP.put(GX, 4); VP.put(LW); VP.put(AR); VP.put(EP, 2)
    X = VP.get(24, 2)
    for i in range(6):
        for hh in range(2): a.D(f"ds_read_b64_tr_b16 {vr(X+4*i+2*hh,2)}, v{TR} offset:{32*i+4*RP*hh}", f"x{i}")
    AB = VP.get(2, 1); AH = VP.get(2, 1)
    for t in range(2):
        if t == 0: a.I(f"v_mov_b32 v{T0}, v{M32}")
        else:
            a.I(f"v_add_u32 v{T0}, 32, v{M32}"); a.I(f"v_cmp_gt_u32 {sr(MP,2)}, 60, v{T0}")
            a.I(f"v_subrev_u32 v{T1}, 16, v{T0}"); a.I(f"v_cndmask_b32 v{T0}, v{T1}, v{T0}, {sr(MP,2)}")
        a.I(f"v_mul_u32_u24 v{T1}, 205, v{T0}"); a.I(f"v_lshrrev_b32 v{T1}, 11, v{T1}")
        a.I(f"v_mul_u32_u24 v{T2}, 10, v{T1}"); a.I(f"v_sub_u32 v{T0}, v{T0}, v{T2}")
        a.I(f"v_mul_u32_u24 v{T2}, {PP}, v{T0}")
        a.I(f"v_mul_u32_u24 v{AB+t}, {A1R}, v{T1}"); a.I(f"v_lshl_add_u32 v{T3}, v{HALF}, 4, v{T2}"); a.I(f"v_add_u32 v{AB+t}, v{AB+t}, v{T3}")
        a.I(f"v_mul_u32_u24 v{AH+t}, {A2R}, v{T1}"); a.I(f"v_lshl_add_u32 v{T3}, v{HALF}, 3, v{T2}"); a.I(f"v_add_u32 v{AH+t}, v{AH+t}, v{T3}")
        a.I(f"s_lshl_b32 s{ST}, s{SW}, 6"); a.I(f"s_add_u32 s{ST}, s{ST}, {A2}"); a.I(f"v_add_u32 v{AH+t}, s{ST}, v{AH+t}")
        a.I(f"v_subrev_u32 v{T2}, 1, v{T1}"); a.I(f"v_subrev_u32 v{T3}, 1, v{T0}")
        a.I(f"v_cmp_gt_u32 vcc, 4, v{T2}"); a.I(f"v_cmp_gt_u32 {sr(MINT[t],2)}, 8, v{T3}")
        a.I(f"s_and_b64 {sr(MINT[t],2)}, {sr(MINT[t],2)}, vcc")
        if t == 1: a.I(f"s_and_b64 {sr(MINT[t],2)}, {sr(MINT[t],2)}, {sr(MP,2)}")
        a.I(f"s_add_u32 s{ST}, s{SY0}, 1"); a.I(f"s_add_u32 s{ST+1}, s{SX0}, 1")
        a.I(f"v_add_u32 v{T1}, s{ST}, v{T1}"); a.I(f"v_add_u32 v{T0}, s{ST+1}, v{T0}"); a.I(f"v_or_b32 v{T0}, v{T0}, v{T1}")
        a.I(f"v_cmp_gt_u32 {sr(MIMG[t],2)}, 64, v{T0}")
    AA = VP.get(); APL = VP.get(); APUB = VP.get()
    a.I(f"v_lshrrev_b32 v{T0}, 3, v{M32}"); a.I(f"v_mul_u32_u24 v{T0}, {A2R}, v{T0}")
    a.I(f"v_and_b32 v{T1}, 7, v{M32}"); a.I(f"v_mul_u32_u24 v{T1}, {PP}, v{T1}")
    a.I(f"v_lshlrev_b32 v{T2}, 4, v{HALF}"); a.I(f"v_add3_u32 v{AA}, v{T0}, v{T1}, v{T2}"); a.I(f"v_add_u32 v{AA}, {A2}, v{AA}")
    a.I(f"s_lshl_b32 s{ST}, s{SB}, 2"); a.I(f"s_add_u32 s{ST}, s{ST}, s{SW}"); a.I(f"s_lshl_b32 s{ST}, s{ST}, 11"); a.I(f"s_add_u32 s{ST}, s{ST}, {ST2}")
    a.I(f"v_lshl_add_u32 v{APL}, v{L}, 5, s{ST}")
    a.I(f"s_lshl_b32 s{ST+1}, s{SSLOT}, 4"); a.I(f"s_add_u32 s{ST}, s{ST}, s{ST+1}"); a.I(f"v_mov_b32 v{APUB}, s{ST}")
    ACC = VP.get(32, 2); E = VP.get(16, 2); G2 = VP.get(8, 2); B2 = VP.get(8, 2)
    AWU = VP.get(); AE = VP.get(); AG = VP.get()
    a.I(f"s_mul_i32 s{ST}, s{SIDX}, 18432"); a.I(f"s_mul_i32 s{ST+1}, s{SW}, 5120"); a.I(f"s_add_u32 s{ST}, s{ST}, s{ST+1}"); a.I(f"s_add_u32 s{ST}, s{ST}, {W1T}")
    a.I(f"v_lshl_add_u32 v{AWU}, v{L}, 4, s{ST}")
    a.I(f"s_lshl_b32 s{ST}, s{SB}, 9"); a.I(f"s_lshl_b32 s{ST+1}, s{SW}, 7"); a.I(f"s_add_u32 s{ST}, s{ST}, s{ST+1}"); a.I(f"s_add_u32 s{ST}, s{ST}, {EMB}")
    a.I(f"v_lshl_add_u32 v{AE}, v{HALF}, 4, s{ST}")
    a.I(f"s_lshl_b32 s{ST}, s{SW}, 6"); a.I(f"v_lshl_add_u32 v{AG}, v{HALF}, 3, s{ST}")
    a.wait(lg="all")
    P.stamp()
    PL = VP.get(8, 2)
    a.I(f"s_mov_b32 s{SCNT}, {cfg['spin']}")
    a.fence()
    a.label("F_POLL1")
    a.I(f"buffer_load_dwordx4 {vr(PL,4)}, v{AS1}, {R}, 0 offen sc0 sc1")
    a.I(f"buffer_load_dwordx4 {vr(PL+4,4)}, v{AJT}, {R}, 0 offen sc0 sc1")
    a.I("s_waitcnt vmcnt(0)")
    a.I(f"v_cmp_eq_u64 vcc, {sr(SN,2)}, {vr(PL+2,2)}"); a.I(f"v_cmp_eq_u64 {sr(ST,2)}, {sr(SN,2)}, {vr(PL+4,2)}")
    a.I(f"v_cmp_eq_u64 {sr(SJ+2,2)}, {sr(SN,2)}, {vr(PL+6,2)}")
    a.I(f"s_sub_u32 s{SCNT}, s{SCNT}, 1"); a.I("s_cbranch_scc1 F_GO1")
    a.I(f"s_and_b64 vcc, vcc, {sr(ST,2)}"); a.I(f"s_and_b64 vcc, vcc, {sr(SJ+2,2)}"); a.I("s_cmp_eq_u64 vcc, -1"); a.I("s_cbranch_scc0 F_POLL1")
    a.label("F_GO1")
    a.vm = []; a.hist = []
    P.stamp()
    def frag(n):
        m = n % 72; base = W1T + (n // 72) * WSZ + (m // 4) * 4096
        pre = f"s_mov_b32 s{SWO}, {base}" if m % 4 == 0 else None
        return (pre, f"buffer_load_dwordx4 {ar((n % 64) * 4, 4)}, v{AW}, {R}, s{SWO} offen offset:{(m % 4) * 1024}", n, f"w{n}")
    q = []
    if cfg["warm"]:
        for k in range(4): q.append((None, f"buffer_load_dwordx4 {vr(ACC+4*k,4)}, v{AWU}, {R}, 0 offen offset:{1024*k}", None, "wu"))
        a.I(f"v_add_u32 v{T3}, 0x1000, v{AWU}")
        q.append((None, f"buffer_load_dwordx4 {vr(ACC+16,4)}, v{T3}, {R}, 0 offen", None, "wu"))
    q += [frag(n) for n in range(8)]
    q += [(None, f"buffer_load_dwordx4 {vr(E+4*k,4)}, v{AE}, {R}, 0 offen offset:{32*k}", None, "emb") for k in range(4)]
    q += [frag(n) for n in range(8, 72)]
    q += [(None, f"global_load_dwordx2 {vr(G2+2*k,2)}, v{AG}, {sr(PG2,2)} offset:{16*k}", None, "g2") for k in range(4)]
    q += [(None, f"global_load_dwordx2 {vr(B2+2*k,2)}, v{AG}, {sr(PB2,2)} offset:{16*k}", None, "b2") for k in range(4)]
    q += [frag(n) for n in range(72, 144)]
    a.bg = q; a.period = cfg["period"]
    a.burst(cfg["burst1"]); a.on = True
    allre = lambda vals, tmps: None
    for st_ in ["row_ror:8", "row_ror:4", "row_ror:2", "row_ror:1"]:
        for v in (PL, PL + 1): a.I(f"v_add_f32_dpp v{v}, v{v}, v{v} {st_} row_mask:0xf bank_mask:0xf")
    for v, t in ((PL, PL + 2), (PL + 1, PL + 3)): a.I(f"v_mov_b32 v{t}, v{v}")
    for v, t in ((PL, PL + 2), (PL + 1, PL + 3)): a.I(f"v_permlane16_swap_b32 v{v}, v{t}")
    for v, t in ((PL, PL + 2), (PL + 1, PL + 3)): a.I(f"v_add_f32 v{v}, v{v}, v{t}")
    MR = VP.get(4, 2)
    mean_rstd(a, PL, PL + 1, MR, T0)
    SC = VP.get(8, 2); SH = VP.get(8, 2)
    unpack(a, SC, G1, 4, SHI); unpack(a, SH, B1, 4, SHI)
    scale_shift(a, SC, SH, 4, MR)
    VP.put(G1, 4); VP.put(B1, 4); VP.put(AS1); VP.put(AJT); VP.put(TR)
    P.stamp()
    V = VP.get(8, 2); Z = VP.get(8, 2); O = VP.get(4, 2)
    for i in range(6):
        unpack(a, V, X + 4 * i, 4, SHI)
        for k in range(4): a.I(f"v_pk_fma_f32 {vr(V+2*k,2)}, {vr(V+2*k,2)}, {vr(SC+2*k,2)}, {vr(SH+2*k,2)}")
        silu_pairs(a, V, Z, 4, SL, SO)
        for k in range(4): a.I(f"v_cvt_pk_bf16_f32 v{O+k}, v{V+2*k}, v{V+2*k+1}")
        for k in range(4): a.I(f"v_cndmask_b32 v{O+k}, 0, v{O+k}, {sr(MV[i],2)}")
        a.D(f"ds_write_b128 v{LX+i}, {vr(O,4)}")
    a.wait(lg="all")
    P.stamp()
    a.I("s_barrier")
    VP.put(X, 24); VP.put(V, 8); VP.put(Z, 8); VP.put(O, 4); VP.put(SC, 8); VP.put(SH, 8); VP.put(LX, 6)
    NB = 4; BR = VP.get(NB * 8, 2)
    def boff(n): j, tp = divmod(n, 9); return (tp // 3) * A1R + (tp % 3) * PP + j * 32
    def bread(n):
        for t in range(2): a.D(f"ds_read_b128 {vr(BR+(n%NB)*8+4*t,4)}, v{AB+t} offset:{boff(n)}", f"b{n}")
    LA = 2
    for n in range(LA): bread(n)
    a.wait(vm="emb")
    for n in range(72):
        if n + LA < 72: bread(n + LA)
        a.wait(vm=f"w{n}", lg=f"b{n}")
        for t in range(2):
            c = vr(E, 16) if n == 0 else vr(ACC + 16 * t, 16)
            a.I(f"v_mfma_f32_32x32x16_bf16 {vr(ACC+16*t,16)}, {ar((n%64)*4,4)}, {vr(BR+(n%NB)*8+4*t,4)}, {c}")
        a.consumed = n + 1
    P.stamp()
    VP.put(BR, NB * 8)
    a.on = False
    SS = VP.get(8, 2)
    for t in range(2):
        A_ = ACC + 16 * t
        a.I(f"v_pk_add_f32 {vr(SS+4*t,2)}, {vr(A_,2)}, {vr(A_+2,2)}"); a.I(f"v_pk_mul_f32 {vr(SS+4*t+2,2)}, {vr(A_,2)}, {vr(A_,2)}")
    for k in range(1, 8):
        for t in range(2):
            A_ = ACC + 16 * t
            if k > 1: a.I(f"v_pk_add_f32 {vr(SS+4*t,2)}, {vr(SS+4*t,2)}, {vr(A_+2*k,2)}")
            a.I(f"v_pk_fma_f32 {vr(SS+4*t+2,2)}, {vr(A_+2*k,2)}, {vr(A_+2*k,2)}, {vr(SS+4*t+2,2)}")
    for t in range(2):
        a.I(f"v_add_f32 v{SS+4*t}, v{SS+4*t}, v{SS+4*t+1}"); a.I(f"v_add_f32 v{SS+4*t+2}, v{SS+4*t+2}, v{SS+4*t+3}")
    for t in range(2):
        a.I(f"v_cndmask_b32 v{SS+4*t}, 0, v{SS+4*t}, {sr(MINT[t],2)}"); a.I(f"v_cndmask_b32 v{SS+4*t+2}, 0, v{SS+4*t+2}, {sr(MINT[t],2)}")
    a.I(f"v_add_f32 v{SS}, v{SS}, v{SS+4}"); a.I(f"v_add_f32 v{SS+1}, v{SS+2}, v{SS+6}")
    allreduce(a, [SS, SS + 1], [SS + 2, SS + 3])
    a.I(f"v_mov_b32 v{SS+2}, s{SN}"); a.I(f"v_mov_b32 v{SS+3}, s{SN+1}")
    a.wait(vm="b2")
    a.I("s_mov_b64 exec, 1")
    a.V(f"buffer_store_dwordx4 {vr(SS,4)}, v{APUB}, {R}, 0 offen sc0 sc1", "pub")
    a.I("s_mov_b64 exec, -1")
    P.stamp()
    a.burst(cfg["burst2"])
    SC2 = VP.get(16, 2); SH2 = VP.get(16, 2)
    unpack(a, SC2, G2, 8, SHI); unpack(a, SH2, B2, 8, SHI)
    VP.put(G2, 8); VP.put(B2, 8)
    OA = E
    for yy in range(4): unpack(a, OA + 4 * yy, XRES + 2 * yy, 2, SHI)
    a.I(f"s_mov_b32 s{SCNT}, {cfg['spin']}")
    a.fence()
    a.label("F_POLL2")
    a.I(f"buffer_load_dwordx4 {vr(PL,4)}, v{APL}, {R}, 0 offen sc0 sc1")
    a.I(f"buffer_load_dwordx4 {vr(PL+4,4)}, v{APL}, {R}, 0 offen offset:16 sc0 sc1")
    a.I("s_waitcnt vmcnt(0)")
    a.I(f"v_cmp_eq_u64 vcc, {sr(SN,2)}, {vr(PL+2,2)}"); a.I(f"v_cmp_eq_u64 {sr(ST,2)}, {sr(SN,2)}, {vr(PL+6,2)}")
    a.I(f"s_sub_u32 s{SCNT}, s{SCNT}, 1"); a.I("s_cbranch_scc1 F_GO2")
    a.I(f"s_and_b64 vcc, vcc, {sr(ST,2)}"); a.I("s_cmp_eq_u64 vcc, -1"); a.I("s_cbranch_scc0 F_POLL2")
    a.label("F_GO2")
    a.vm = []; a.hist = []
    P.stamp()
    PE = VP.get(8, 2); APE = VP.get()
    a.I(f"s_or_b32 s{ST}, s2, s{SW}"); a.I(f"s_cmp_eq_u32 s{ST}, 0"); a.I("s_cbranch_scc0 F_NOEP")
    a.I(f"v_lshlrev_b32 v{APE}, 5, v{L}"); a.I(f"v_add_u32 v{APE}, {ST2 + 4 * 2048}, v{APE}")
    a.I(f"buffer_load_dwordx4 {vr(PE,4)}, v{APE}, {R}, 0 offen sc0 sc1")
    a.I(f"buffer_load_dwordx4 {vr(PE+4,4)}, v{APE}, {R}, 0 offen offset:16 sc0 sc1")
    a.label("F_NOEP")
    a.hist = []
    a.on = True; a.acc = 0
    a.I(f"v_pk_add_f32 {vr(PL,2)}, {vr(PL,2)}, {vr(PL+4,2)}")
    allreduce(a, [PL, PL + 1], [PL + 2, PL + 3])
    mean_rstd(a, PL, PL + 1, MR, T0)
    scale_shift(a, SC2, SH2, 8, MR)
    Z = VP.get(16, 2); O = VP.get(16, 2)
    for t in range(2):
        A_ = ACC + 16 * t
        for k in range(8): a.I(f"v_pk_fma_f32 {vr(A_+2*k,2)}, {vr(A_+2*k,2)}, {vr(SC2+2*k,2)}, {vr(SH2+2*k,2)}")
        silu_pairs(a, A_, Z, 8, SL, SO)
        for k in range(8): a.I(f"v_cvt_pk_bf16_f32 v{O+8*t+k}, v{A_+2*k}, v{A_+2*k+1}")
        for k in range(8): a.I(f"v_cndmask_b32 v{O+8*t+k}, 0, v{O+8*t+k}, {sr(MIMG[t],2)}")
        on = a.on; a.on = False
        if t == 1: a.I(f"s_mov_b64 exec, {sr(MP,2)}")
        for q_ in range(4): a.D(f"ds_write_b64 v{AH+t}, {vr(O+8*t+2*q_,2)} offset:{16*q_}")
        if t == 1: a.I("s_mov_b64 exec, -1")
        a.on = on
    NB2 = 6; BR = VP.get(NB2 * 4, 2)
    a.wait(lg="all")
    P.stamp()
    a.I("s_barrier")
    def aoff(n): j, tp = divmod(n, 9); return (tp // 3) * A2R + (tp % 3) * PP + j * 32
    def aread(n): a.D(f"ds_read_b128 {vr(BR+(n%NB2)*4,4)}, v{AA} offset:{aoff(n)}", f"a{n}")
    LA = 3
    a.period = 32
    for n in range(LA): aread(n)
    for n in range(72):
        if n + LA < 72: aread(n + LA)
        a.wait(vm=f"w{72+n}", lg=f"a{n}")
        a.I(f"v_mfma_f32_32x32x16_bf16 {vr(OA,16)}, {vr(BR+(n%NB2)*4,4)}, {ar(((72+n)%64)*4,4)}, {vr(OA,16)}")
        a.consumed = 72 + n + 1
    assert not a.bg
    a.on = False
    P.stamp()
    for k in range(8): a.I(f"v_cvt_pk_bf16_f32 v{O+k}, v{OA+2*k}, v{OA+2*k+1}")
    for k in range(2):
        a.I(f"v_permlane32_swap_b32 v{O+4*k}, v{O+4*k+2}"); a.I(f"v_permlane32_swap_b32 v{O+4*k+1}, v{O+4*k+3}")
    for k in range(2): a.V(f"global_store_dwordx4 v{AO}, {vr(O+4*k,4)}, {sr(POUT,2)} offset:{256*k}")
    a.I(f"s_or_b32 s{ST}, s2, s{SW}"); a.I(f"s_cmp_eq_u32 s{ST}, 0"); a.I("s_cbranch_scc0 F_FIN")
    a.I(f"s_mov_b32 s{SCNT}, {cfg['spin']}")
    a.fence()
    a.label("F_POLL3")
    a.I(f"v_cmp_eq_u64 vcc, {sr(SN,2)}, {vr(PE+2,2)}"); a.I(f"v_cmp_eq_u64 {sr(ST,2)}, {sr(SN,2)}, {vr(PE+6,2)}")
    a.I(f"s_sub_u32 s{SCNT}, s{SCNT}, 1"); a.I("s_cbranch_scc1 F_GO3")
    a.I(f"s_and_b64 vcc, vcc, {sr(ST,2)}"); a.I("s_cmp_eq_u64 vcc, -1"); a.I("s_cbranch_scc1 F_GO3")
    a.I(f"buffer_load_dwordx4 {vr(PE,4)}, v{APE}, {R}, 0 offen sc0 sc1")
    a.I(f"buffer_load_dwordx4 {vr(PE+4,4)}, v{APE}, {R}, 0 offen offset:16 sc0 sc1")
    a.I("s_waitcnt vmcnt(0)")
    a.I("s_branch F_POLL3")
    a.label("F_GO3")
    a.hist = []
    a.I(f"v_mov_b32 v{T0}, {EPOCH}"); a.I(f"v_mov_b32 v{PL}, s{SN}"); a.I(f"v_mov_b32 v{PL+1}, s{SN+1}")
    a.I("s_mov_b64 exec, 1")
    a.V(f"global_store_dwordx2 v{T0}, {vr(PL,2)}, {WS} sc0 sc1")
    a.I("s_mov_b64 exec, -1")
    a.label("F_FIN")
    if prof:
        a.wait(vm="all"); P.stamp(); P.dump(SW, 0)
    a.label("F_END")
    a.I("s_endpgm")
    print("fused vgpr high water", VP.hw, "nops", a.nops, file=sys.stderr)
    return a.text() + descriptor(NAME, 512, 256)

REF = open("standalone__adm_resblock__diffusion.s.ref").read()
HDR = REF.split("; Override launch")[0]
CFG = dict(warm=True, spin=1 << 16, period=64, burst1=6, burst2=10)
def build_all(prof=False, cfg=None):
    c = dict(CFG); c.update(cfg or {})
    s = HDR
    s += f"; @launch grid=(256,1,1) block=(256,1,1) lds={LDS3}\n"
    s += '.amdgcn_target "amdgcn-amd-amdhsa--gfx950"\n'
    s += gen_fused(prof, c)
    return s
if __name__ == "__main__":
    prof = "prof" in sys.argv
    open(sys.argv[1], "w").write(build_all(prof))
```

```python
import re
TRANS = ("v_exp_f32", "v_rcp_f32", "v_rsq_f32", "v_log_f32", "v_sqrt_f32", "v_sin_f32", "v_cos_f32")
def regs_of(op):
    op = op.strip()
    m = re.fullmatch(r"-?(?:abs\()?([vas])\[(\d+):(\d+)\]\)?", op)
    if m: return [(m.group(1), i) for i in range(int(m.group(2)), int(m.group(3)) + 1)]
    m = re.fullmatch(r"-?(?:abs\()?([vas])(\d+)\)?", op)
    if m: return [(m.group(1), int(m.group(2)))]
    if op == "vcc": return [("s", 106), ("s", 107)]
    if op == "exec": return [("s", 126), ("s", 127)]
    if op == "m0": return [("s", 124)]
    return []
class Ins:
    def __init__(s, text):
        s.text = text
        t = text.split(";")[0].strip()
        p = t.split(None, 1)
        s.mn = p[0]
        rest = p[1] if len(p) > 1 else ""
        core = re.sub(r"\s+\w+:\[[^\]]*\]", "", " " + rest).strip()
        ops = [o.strip() for o in core.split(",")] if core else []
        if ops:
            last = ops[-1].split()
            ops[-1] = last[0] if last else ""
        s.ops = ops
        mn = s.mn
        s.mfma = mn.startswith("v_mfma")
        s.valu = mn.startswith("v_") and not s.mfma
        s.trans = any(mn.startswith(x) for x in TRANS)
        s.dpp = "_dpp" in mn or "row_" in rest or "quad_perm" in rest
        s.perml = mn.startswith("v_permlane")
        s.rdlane = mn.startswith("v_readlane") or mn.startswith("v_readfirstlane")
        s.vmem = mn.startswith("buffer_") or mn.startswith("global_")
        s.ds = mn.startswith("ds_")
        s.salu = mn.startswith("s_")
        s.store = (s.vmem and "store" in mn) or (s.ds and "write" in mn)
        R = [regs_of(o) for o in ops]
        s.w = []; s.r = []
        if s.store or mn in ("s_cmp_eq_u32", "s_cmp_lg_u32", "s_cmp_lt_u32", "s_cmp_ge_u32", "s_cmp_gt_u32", "s_cmp_le_u32", "s_cmp_eq_u64", "s_cmp_lg_u64"):
            for x in R: s.r += x
        elif mn.startswith(("s_waitcnt", "s_nop", "s_barrier", "s_branch", "s_cbranch", "s_endpgm", "s_setprio", "s_sleep")):
            pass
        elif s.perml:
            s.w = R[0] + R[1]; s.r = R[0] + R[1]
        elif R:
            s.w = list(R[0])
            for x in R[1:]: s.r += x
            if mn.startswith(("v_fmac", "v_dot2c", "v_pk_fmac")) or s.dpp: s.r += R[0]
            if mn.startswith("v_cndmask") and len(ops) == 3: s.r += regs_of("vcc")
            if mn.startswith(("v_add_co", "v_sub_co")): s.w += R[1]
            if mn.startswith(("v_addc_co",)): s.w += R[1]
            if mn.startswith("s_and_saveexec") or mn.startswith("s_or_saveexec"): s.w += regs_of("exec")
        s.C = R[3] if s.mfma and len(R) > 3 else []
        s.AB = (R[1] + R[2]) if s.mfma else []
        s.states = 1
        if mn == "s_nop": s.states = int(ops[0]) + 1
        s.is_label = False
def need(p, c):
    n = 0
    pw = set(p.w); cr = set(c.r); cw = set(c.w)
    pv = {x for x in pw if x[0] in "va"}; ps = {x for x in pw if x[0] == "s"}
    if p.mn.startswith("v_dot") and (c.valu or c.mfma or c.vmem or c.ds):
        srcc = set(regs_of(c.ops[3])) if (c.mn == p.mn and len(c.ops) > 3) else set()
        srcab = set(regs_of(c.ops[1]) + regs_of(c.ops[2])) if (c.mn == p.mn and len(c.ops) > 3) else cr
        if pv & srcab or (c.mn != p.mn and pv & (cr | cw)): n = max(n, 3)
    if p.valu:
        if c.mfma and pv & cr: n = max(n, 2)
        if c.dpp and pv & cr: n = max(n, 2)
        if c.perml and pv & cr: n = max(n, 2)
        if c.rdlane and pv & cr: n = max(n, 1)
        if p.trans and c.valu and not c.trans and pv & cr: n = max(n, 1)
        if p.trans and c.trans and pv & cr: n = max(n, 1)
        if ps & cr:
            if c.vmem: n = max(n, 5)
            elif c.rdlane: n = max(n, 4)
            elif c.valu or c.mfma: n = max(n, 2)
            elif c.salu: n = max(n, 2)
    if p.mfma:
        if c.mfma:
            if pv & set(c.AB): n = max(n, 12)
            if pv & set(c.C) and set(p.w) != set(c.C): n = max(n, 10)
            if pv & cw and set(p.w) != set(c.C): n = max(n, 12)
        elif (c.valu or c.vmem or c.ds) and pv & (cr | cw): n = max(n, 12)
        if c.valu and set(p.C) & cw: n = max(n, 7)
    if p.vmem and p.store and ("x4" in p.mn or "x3" in p.mn or "x2" in p.mn):
        pd = {x for x in p.r if x[0] in "va"}
        if (c.valu or c.mfma) and pd & cw: n = max(n, 2)
        elif (c.vmem or c.ds) and pd & cw: n = max(n, 1)
    if p.salu and ("s", 124) in pw and c.vmem and " lds" in c.text: n = max(n, 1)
    return n
class Asm:
    def __init__(s):
        s.out = []; s.hist = []; s.vm = []; s.lg = []; s.nops = 0
    def raw(s, t): s.out.append(t)
    def label(s, n):
        s.out.append(n + ":")
    def fence(s):
        s.I("s_nop 7"); s.I("s_nop 3")
    def I(s, text):
        c = Ins(text)
        dist = 0; req = 0
        for p in reversed(s.hist[-24:]):
            k = need(p, c) - dist
            if k > req: req = k
            dist += p.states
            if dist >= 20: break
        while req > 0:
            k = min(req, 16); nop = Ins(f"s_nop {k-1}"); s.out.append("  " + nop.text); s.hist.append(nop); req -= k; s.nops += 1
        s.out.append("  " + text); s.hist.append(c)
    def V(s, text, tag=None):
        s.I(text); s.vm.append(tag)
    def D(s, text, tag=None):
        s.I(text); s.lg.append(tag)
    def cnt(s, q, tag):
        idx = max(i for i, t in enumerate(q) if t == tag)
        return len(q) - 1 - idx, idx
    def wait(s, vm=None, lg=None):
        parts = []
        if vm is not None:
            if vm == "all": n = 0; s.vm = []
            elif vm not in s.vm: n = None
            else:
                n, i = s.cnt(s.vm, vm); s.vm = s.vm[i + 1:]
            if n is not None:
                assert n <= 63, n
                parts.append(f"vmcnt({n})")
        if lg is not None:
            if lg == "all": n = 0; s.lg = []
            elif lg not in s.lg: n = None
            else:
                n, i = s.cnt(s.lg, lg); s.lg = s.lg[i + 1:]
            if n is not None:
                assert n <= 15, n
                parts.append(f"lgkmcnt({n})")
        if parts: s.I("s_waitcnt " + " ".join(parts))
    def text(s): return "\n".join(s.out) + "\n"
class Pool:
    def __init__(s, lo, hi, pre):
        s.free = set(range(lo, hi)); s.pre = pre; s.hw = lo
    def get(s, n=1, al=None):
        al = al or (1 if n == 1 else 2)
        lo = min(s.free)
        b = (lo + al - 1) // al * al
        while True:
            if all((b + i) in s.free for i in range(n)): break
            b += al
            assert b < 1000, "out of registers"
        for i in range(n): s.free.discard(b + i)
        s.hw = max(s.hw, b + n)
        return b
    def put(s, b, n=1):
        for i in range(n): s.free.add(b + i)
def vr(b, n=1): return f"v{b}" if n == 1 else f"v[{b}:{b+n-1}]"
def ar(b, n=1): return f"a{b}" if n == 1 else f"a[{b}:{b+n-1}]"
def sr(b, n=1): return f"s{b}" if n == 1 else f"s[{b}:{b+n-1}]"
```

```python
import sys
from asmlib import *
XT = 0; W1T = 0x200000; WSZ = 294912; W2T = W1T + WSZ
ST1 = 0x290000; ST2 = 0x292000; EMB = 0x294000; PROF = 0x300000
WS_BYTES = 0x400000
A1 = 0; A1R = 3488; PP = 272
XR = 8 * A1R
A2 = XR + 32 * PP; A2R = 2944
LDS2 = A2 + 6 * A2R
SENT = 0xFFFFFFFF
NLOG2E = 0xBFB8AA3B
PX, PT, PG1, PB1, PW1, PWE, PG2, PB2, PW2, POUT, PDBG, PWS = [36 + 2 * i for i in range(12)]

def header(a, name):
    a.raw(f".text\n.globl {name}\n.p2align 8\n.type {name},@function\n{name}:")
def descriptor(name, vg, accum, sg=102):
    return f""".section .rodata,"a"
.p2align 6
.amdhsa_kernel {name}
  .amdhsa_next_free_vgpr {vg}
  .amdhsa_next_free_sgpr {sg}
  .amdhsa_accum_offset {accum}
  .amdhsa_group_segment_fixed_size 0
  .amdhsa_kernarg_size 96
  .amdhsa_user_sgpr_count 2
  .amdhsa_user_sgpr_kernarg_segment_ptr 1
  .amdhsa_system_sgpr_workgroup_id_x 1
.end_amdhsa_kernel
"""
def load_kernarg(a):
    a.I("s_load_dwordx16 s[36:51], s[0:1], 0")
    a.I("s_load_dwordx8 s[52:59], s[0:1], 64")
def allreduce(a, vals, tmps, quad_only=False):
    steps = ["quad_perm:[1,0,3,2]", "quad_perm:[2,3,0,1]"] if quad_only else ["row_ror:8", "row_ror:4", "row_ror:2", "row_ror:1"]
    for st in steps:
        for v in vals: a.I(f"v_add_f32_dpp v{v}, v{v}, v{v} {st} row_mask:0xf bank_mask:0xf")
    for sw in ("v_permlane16_swap_b32", "v_permlane32_swap_b32"):
        for v, t in zip(vals, tmps): a.I(f"v_mov_b32 v{t}, v{v}")
        for v, t in zip(vals, tmps): a.I(f"{sw} v{v}, v{t}")
        for v, t in zip(vals, tmps): a.I(f"v_add_f32 v{v}, v{v}, v{t}")
class Prof:
    def __init__(s, a, on):
        s.a = a; s.on = on; s.n = 0
    def rt(s, k):
        if s.on:
            s.a.I("s_memrealtime s[98:99]"); s.a.I("s_waitcnt lgkmcnt(0)"); s.a.I(f"s_mov_b32 s{96+k}, s98"); s.a.lg = []
    def stamp(s):
        if not s.on: return
        assert s.n < 12
        s.a.I("s_memrealtime s[98:99]" if getattr(s, "real", False) else "s_memtime s[98:99]"); s.a.I("s_waitcnt lgkmcnt(0)"); s.a.I(f"s_mov_b32 s{84+s.n}, s98"); s.a.lg = []; s.n += 1
    def dump_dbg(s, sw, wg, wave):
        a = s.a
        s.rt(1)
        a.I(f"s_cmp_lg_u32 s2, {wg}"); a.I("s_cbranch_scc1 F_END")
        a.I(f"s_cmp_lg_u32 s{sw}, {wave}"); a.I("s_cbranch_scc1 F_END")
        a.I("s_mov_b64 exec, 1")
        a.I("v_mov_b32 v1, 0")
        a.I("s_sub_u32 s3, s97, s96"); a.I("v_mov_b32 v2, s3"); a.I(f"global_store_dword v1, v2, s[{PDBG}:{PDBG+1}]")
        for i in range(1, s.n):
            a.I(f"s_sub_u32 s3, s{84+i}, s84"); a.I("v_mov_b32 v2, s3")
            a.I(f"global_store_dword v1, v2, s[{PDBG}:{PDBG+1}] offset:{4*i}")
    def dump_agg(s):
        a = s.a
        a.I("s_getreg_b32 s3, hwreg(20, 0, 4)"); a.I("s_and_b32 s96, s2, 7"); a.I("s_cmp_lg_u32 s3, s96"); a.I("s_cselect_b32 s97, 1, 0")
        a.I("s_mov_b64 exec, 1")
        a.I("v_mov_b32 v1, 0")
        def at(op, slot): a.I(f"global_atomic_{op} v1, v2, s[{PDBG}:{PDBG+1}] offset:{4*slot}")
        a.I("s_not_b32 s3, s84"); a.I("v_mov_b32 v2, s3"); at("umax", 0)
        for i in range(s.n):
            a.I(f"v_mov_b32 v2, s{84+i}"); at("umax", 1 + i)
        a.I("v_mov_b32 v2, s97"); at("add", 13)
        a.I("s_not_b32 s3, s89"); a.I("v_mov_b32 v2, s3"); at("umax", 14)
        a.I(f"s_not_b32 s3, s{84+s.n-1}"); a.I("v_mov_b32 v2, s3"); at("umax", 15)
    def dump(s, sw, kidx):
        if not s.on: return
        a = s.a
        s.rt(1)
        a.I("s_mov_b64 exec, 1")
        a.I("s_lshl_b32 s3, s2, 2"); a.I(f"s_add_u32 s3, s3, s{sw}"); a.I("s_lshl_b32 s3, s3, 6")
        a.I(f"s_add_u32 s3, s3, {PROF + kidx * 0x20000}")
        a.I("v_mov_b32 v1, s3")
        for i in range(16):
            if i < 12 and i >= s.n: continue
            a.I(f"v_mov_b32 v2, s{84+i if i < 14 else 86+i}")
            a.I(f"global_store_dword v1, v2, s[{PWS}:{PWS+1}] offset:{4*i}")

def gen_k1(prof):
    a = Asm(); name = "prep_kernel"; header(a, name)
    P = Prof(a, prof)
    P.rt(0); P.stamp()
    a.I("s_cmp_ge_u32 s2, 280"); a.I("s_cbranch_scc1 K1_END")
    load_kernarg(a)
    L = 1; SW = 4
    a.I("v_lshrrev_b32 v2, 6, v0"); a.I(f"v_and_b32 v{L}, 63, v0")
    a.I(f"v_readfirstlane_b32 s{SW}, v2")
    a.I("s_cmp_lt_u32 s2, 16"); a.I("s_cbranch_scc1 K1_W")
    a.I("s_cmp_lt_u32 s2, 24"); a.I("s_cbranch_scc1 K1_E")
    a.I("s_sub_u32 s5, s2, 24")
    a.I("s_and_b32 s6, s5, 7"); a.I("s_lshr_b32 s7, s6, 2"); a.I("s_and_b32 s6, s6, 3"); a.I("s_lshr_b32 s5, s5, 3")
    a.I("s_lshr_b32 s8, s5, 1"); a.I("s_lshl_b32 s9, s6, 4"); a.I("s_add_u32 s8, s8, s9")
    a.I("s_and_b32 s9, s5, 1")
    a.I("s_lshl_b32 s10, s6, 5"); a.I("s_add_u32 s10, s10, s5")
    a.I("s_lshl_b32 s11, s7, 7"); a.I(f"s_lshl_b32 s12, s{SW}, 5"); a.I("s_add_u32 s11, s11, s12")
    a.I("s_lshl_b32 s11, s11, 13"); a.I("s_lshl_b32 s12, s8, 7"); a.I("s_add_u32 s11, s11, s12")
    a.I("s_lshl_b32 s12, s9, 6"); a.I("s_add_u32 s11, s11, s12")
    a.I(f"v_lshrrev_b32 v2, 2, v{L}"); a.I(f"v_and_b32 v3, 3, v{L}"); a.I("v_lshlrev_b32 v3, 4, v3")
    a.I("v_lshl_add_u32 v2, v2, 13, v3"); a.I("v_add_u32 v2, s11, v2"); a.I("v_add_u32 v3, 0x20000, v2")
    a.I("s_waitcnt lgkmcnt(0)")
    a.V(f"global_load_dwordx4 v[8:11], v2, s[{PX}:{PX+1}]", "x0")
    a.V(f"global_load_dwordx4 v[12:15], v3, s[{PX}:{PX+1}]", "x1")
    a.I(f"s_lshl_b32 s12, s{SW}, 11")
    a.I(f"v_lshl_add_u32 v4, v{L}, 4, s12")
    a.I(f"v_lshrrev_b32 v5, 5, v{L}"); a.I("v_lshlrev_b32 v5, 3, v5")
    a.I(f"v_bfe_u32 v6, v{L}, 2, 2"); a.I("v_add_u32 v5, v5, v6"); a.I("v_lshlrev_b32 v5, 6, v5")
    a.I(f"v_bfe_u32 v6, v{L}, 4, 1"); a.I("v_lshl_add_u32 v5, v6, 5, v5")
    a.I(f"v_and_b32 v6, 3, v{L}"); a.I("v_lshl_add_u32 v5, v6, 3, v5"); a.I("v_add_u32 v5, s12, v5")
    a.I("s_lshl_b32 s13, s7, 6"); a.I("s_add_u32 s13, s13, s8"); a.I("s_lshl_b32 s13, s13, 6")
    a.I("s_lshl_b32 s14, s9, 5"); a.I("s_add_u32 s13, s13, s14"); a.I("s_lshl_b32 s13, s13, 8")
    a.I(f"s_lshl_b32 s14, s{SW}, 6"); a.I("s_add_u32 s13, s13, s14")
    a.I(f"v_and_b32 v6, 31, v{L}"); a.I("v_lshlrev_b32 v6, 8, v6")
    a.I(f"v_lshrrev_b32 v7, 5, v{L}"); a.I("v_lshl_add_u32 v6, v7, 4, v6"); a.I("v_add_u32 v6, s13, v6")
    a.I("s_lshl_b32 s14, s7, 2"); a.I(f"s_add_u32 s14, s14, s{SW}"); a.I("s_lshl_b32 s14, s14, 7"); a.I("s_add_u32 s14, s14, s10"); a.I("s_lshl_b32 s14, s14, 3")
    a.I(f"s_add_u32 s15, s14, {ST2}"); a.I(f"s_add_u32 s14, s14, {ST1}")
    a.I("s_mov_b32 s16, 0x3f803f80")
    a.I("v_mov_b32 v16, 0"); a.I("v_mov_b32 v17, 0")
    a.wait(vm="x0")
    a.D("ds_write_b128 v4, v[8:11]")
    for k in range(4):
        a.I(f"v_dot2_f32_bf16 v16, v{8+k}, s16, v16"); a.I(f"v_dot2_f32_bf16 v17, v{8+k}, v{8+k}, v17")
    a.wait(vm="x1")
    a.D("ds_write_b128 v4, v[12:15] offset:1024")
    for k in range(4):
        a.I(f"v_dot2_f32_bf16 v16, v{12+k}, s16, v16"); a.I(f"v_dot2_f32_bf16 v17, v{12+k}, v{12+k}, v17")
    a.wait(lg="all")
    for k2 in range(2):
        for hh in range(2):
            a.D(f"ds_read_b64_tr_b16 v[{20+4*k2+2*hh}:{21+4*k2+2*hh}], v5 offset:{k2*1024+hh*256}", f"t{k2}")
    allreduce(a, [16, 17], [18, 19])
    a.wait(lg="t0")
    a.V(f"global_store_dwordx4 v6, v[20:23], s[{PWS}:{PWS+1}]")
    a.wait(lg="t1")
    a.V(f"global_store_dwordx4 v6, v[24:27], s[{PWS}:{PWS+1}] offset:32")
    P.stamp()
    a.I("s_mov_b64 exec, 1")
    a.I("v_mov_b32 v2, s14"); a.I("v_mov_b32 v3, s15"); a.I("v_mov_b32 v18, 0"); a.I("v_mov_b32 v19, -1")
    a.V(f"global_store_dwordx2 v2, v[16:17], s[{PWS}:{PWS+1}]")
    a.V(f"global_store_dwordx2 v3, v[18:19], s[{PWS}:{PWS+1}]")
    if prof:
        a.wait(vm="all"); P.stamp(); P.dump(SW, 0)
    a.I("s_endpgm")
    a.hist = []; a.vm = []; a.lg = []
    a.label("K1_W")
    a.I("s_lshl_b32 s5, s2, 2"); a.I(f"s_add_u32 s5, s5, s{SW}")
    a.I("s_lshr_b32 s6, s5, 5"); a.I("s_bfe_u32 s7, s5, 0x20003"); a.I("s_and_b32 s8, s5, 7")
    a.I(f"v_and_b32 v2, 31, v{L}"); a.I("s_lshl_b32 s9, s7, 5"); a.I("v_add_u32 v2, s9, v2")
    a.I("s_movk_i32 s9, 2304"); a.I("v_mul_lo_u32 v2, v2, s9")
    a.I(f"v_lshrrev_b32 v3, 5, v{L}"); a.I("s_lshl_b32 s9, s8, 1"); a.I("v_add_u32 v3, s9, v3")
    a.I("v_mul_u32_u24 v3, 144, v3"); a.I("v_add_u32 v2, v2, v3")
    a.I("s_lshl_b32 s9, s7, 3"); a.I("s_add_u32 s9, s9, s8"); a.I("s_mul_i32 s9, s9, 9216")
    a.I(f"s_mul_i32 s10, s6, {WSZ}"); a.I("s_add_u32 s9, s9, s10"); a.I(f"s_add_u32 s9, s9, {W1T}")
    a.I(f"v_lshl_add_u32 v4, v{L}, 4, s9"); a.I("v_add_u32 v5, 0x1000, v4"); a.I("v_add_u32 v6, 0x2000, v4")
    a.I("s_mov_b32 s12, 0x07060100"); a.I("s_mov_b32 s13, 0x05040302")
    a.I("s_waitcnt lgkmcnt(0)")
    a.I("s_cmp_eq_u32 s6, 0")
    a.I(f"s_cselect_b32 s10, s{PW1}, s{PW2}"); a.I(f"s_cselect_b32 s11, s{PW1+1}, s{PW2+1}")
    for k in range(9): a.V(f"global_load_dwordx4 v[{8+4*k}:{11+4*k}], v2, s[10:11] offset:{16*k}", f"w{k}")
    a.wait(vm="all")
    for t in range(9):
        o = 48 + 4 * (t % 3)
        for q in range(4):
            lo = 8 + 9 * q + t // 2; hi = 8 + 9 * q + (9 + t) // 2
            a.I(f"v_perm_b32 v{o+q}, v{hi}, v{lo}, s{12 + (t & 1)}")
        a.V(f"global_store_dwordx4 v{4 + t // 4}, v[{o}:{o+3}], s[{PWS}:{PWS+1}] offset:{(t % 4) * 1024}")
    a.I("s_endpgm")
    a.hist = []; a.vm = []; a.lg = []
    a.label("K1_E")
    a.I("s_sub_u32 s5, s2, 16"); a.I("s_lshl_b32 s5, s5, 2"); a.I(f"s_add_u32 s5, s5, s{SW}")
    a.I("s_lshr_b32 s6, s5, 4"); a.I("s_and_b32 s7, s5, 15")
    a.I("s_mul_i32 s8, s6, 768"); a.I(f"v_lshl_add_u32 v2, v{L}, 1, s8")
    a.I("s_lshl_b32 s8, s7, 4"); a.I(f"v_lshl_add_u32 v3, v{L}, 8, s8")
    for i in range(1, 6): a.I(f"v_add_u32 v{3+i}, {i*16384}, v3")
    a.I("s_lshl_b32 s8, s6, 9"); a.I("s_lshl_b32 s9, s7, 5"); a.I("s_add_u32 s8, s8, s9"); a.I(f"s_add_u32 s8, s8, {EMB}")
    a.I("s_waitcnt lgkmcnt(0)")
    for i in range(6): a.V(f"global_load_ushort v{10+i}, v2, s[{PT}:{PT+1}] offset:{128*i}", f"t{i}")
    for i in range(6): a.V(f"global_load_dwordx4 v[{16+4*i}:{19+4*i}], v{3+i}, s[{PWE}:{PWE+1}]", f"e{i}")
    for k in range(8): a.I(f"v_mov_b32 v{40+k}, 0")
    a.I(f"s_mov_b32 s12, {NLOG2E:#x}"); a.I("s_mov_b32 s13, 0xffff0000")
    a.wait(vm="t5")
    for i in range(6): a.I(f"v_lshlrev_b32 v{10+i}, 16, v{10+i}")
    for i in range(6): a.I(f"v_mul_f32 v{50+i}, s12, v{10+i}")
    for i in range(6): a.I(f"v_exp_f32 v{50+i}, v{50+i}")
    for i in range(6): a.I(f"v_add_f32 v{50+i}, 1.0, v{50+i}")
    for i in range(6): a.I(f"v_rcp_f32 v{50+i}, v{50+i}")
    for i in range(6): a.I(f"v_mul_f32 v{10+i}, v{10+i}, v{50+i}")
    for i in range(6):
        a.wait(vm=f"e{i}")
        for k in range(4):
            a.I(f"v_lshlrev_b32 v56, 16, v{16+4*i+k}"); a.I(f"v_and_b32 v57, s13, v{16+4*i+k}")
            a.I(f"v_fmac_f32 v{40+2*k}, v{10+i}, v56"); a.I(f"v_fmac_f32 v{41+2*k}, v{10+i}, v57")
    allreduce(a, list(range(40, 48)), list(range(50, 58)))
    a.I("s_mov_b64 exec, 1"); a.I("v_mov_b32 v2, s8")
    a.V(f"global_store_dwordx4 v2, v[40:43], s[{PWS}:{PWS+1}]")
    a.V(f"global_store_dwordx4 v2, v[44:47], s[{PWS}:{PWS+1}] offset:16")
    a.label("K1_END")
    a.I("s_endpgm")
    return a.text() + descriptor(name, 64, 64)
```

```python
from gen import *
from gen2 import silu_pairs, mean_rstd, scale_shift, unpack
import gen
NAME = "standalone__adm_resblock__diffusion_kernel"
ST1 = 0x296000; JT = 0x2A0000; EPOCH = 0x291400; EMB = 0x291800; ST2 = 0x292000
RAW = 8 * A1R + 16; RP = 200
A2 = 8 * A1R
LN = RAW + 128 * RP + 16
LDS3 = LN + 32
assert LDS3 >= A2 + 6 * A2R
K_LO = 0x9E3779B9; K_HI = 0x7F4A7C15
def cost(t):
    m = t.split()[0]
    if m.startswith("v_mfma"): return 32
    if any(m.startswith(x) for x in TRANS): return 16
    if m.startswith("s_nop"): return 4 * (int(t.split()[1]) + 1) // 2
    if m.startswith("s_waitcnt"): return 0
    if m.startswith("ds_"): return 8
    return 4
class Asm2(Asm):
    def __init__(s):
        super().__init__(); s.bg = []; s.on = False; s.acc = 0; s.period = 64; s.inbg = False; s.consumed = 0; s.restore = None
    def can(s):
        if not s.bg or len(s.vm) > 61: return False
        fr = s.bg[0][2]
        if s.bg[0][3] == "hold": return False
        return fr is None or fr < s.consumed + 64
    def issue(s):
        pre, text, fr, tag = s.bg.pop(0)
        s.inbg = True
        if pre: Asm.I(s, pre)
        Asm.I(s, text); s.vm.append(tag); s.inbg = False
    def I(s, text):
        Asm.I(s, text)
        if s.on and not s.inbg:
            s.acc += cost(text)
            if s.acc >= s.period and s.can():
                s.issue(); s.acc = min(s.acc - s.period, s.period // 2)
    def burst(s, n):
        for _ in range(n):
            if s.can(): s.issue()
        s.acc = 0
    def wait(s, vm=None, lg=None):
        while vm is not None and vm != "all" and any(b[3] == vm for b in s.bg):
            assert s.can(), ("background queue blocked", vm); s.issue()
        on = s.on; s.on = False
        Asm.wait(s, vm, lg); s.on = on
    def V(s, text, tag=None):
        on = s.on; s.on = False
        Asm.I(s, text); s.vm.append(tag); s.on = on
    def reset(s):
        s.hist = []; s.vm = []; s.lg = []

class Rec:
    def __init__(s): s.l = []
    def I(s, t): s.l.append(("I", t))
    def D(s, t, tag=None): s.l.append(("D", t, tag))
    def block(s, items): s.l.append(("B", items))
    def total(s): return sum(icost(x) for x in s.l)
def icost(x): return cost(x[1]) if x[0] != "B" else sum(icost(y) for y in x[1])
def emit(a, x):
    on = a.on; a.on = False
    if x[0] == "I": a.I(x[1])
    elif x[0] == "D": a.D(x[1], x[2])
    else:
        for y in x[1]: emit(a, y)
    a.on = on
class Merge:
    def __init__(s, a, rec, slots, pre=0, paced=False):
        s.a = a; s.l = rec.l; s.credit = pre
        while paced and s.l and s.credit > 0:
            x = s.l.pop(0); s.credit -= icost(x)
            if x[0] == "I": a.I(x[1])
            else: emit(a, x)
        s.run(); s.bud = max(0, -(-(rec.total()) // slots))
    def run(s):
        while s.l and s.credit > 0:
            x = s.l.pop(0); emit(s.a, x); s.credit -= icost(x)
    def slot(s): s.credit += s.bud; s.run()
    def flush(s): s.credit = 1 << 30; s.run()
JORD = [0, 2, 4, 6, 1, 3, 5, 7]
def kperm(n): return JORD[n // 9] * 9 + n % 9

def gen_fused(prof, cfg):
    a = Asm2(); header(a, NAME)
    P = Prof(a, prof); P.real = bool(cfg.get("agg"))
    def fence():
        if cfg["fence"]: a.fence()
    VP = Pool(1, 256, "v")
    SW, SB, STY, STX, SSLOT, SIDX, SY0, SX0 = 4, 5, 6, 7, 8, 9, 10, 11
    SRD = 12; SL, SO = 16, 18; SHI = 20; SOFF = 21; ST = 22
    MV = [24 + 2 * i for i in range(6)]
    SRX = 60; SN = 64; SJ = 66; SWO = 83
    MINT = [72, 74]; MIMG = [76, 78]; MP = 80; SCNT = 82
    R = sr(SRD, 4); RX = sr(SRX, 4); WS = sr(PWS, 2)
    P.rt(0); P.stamp()
    a.I("s_cmp_ge_u32 s2, 256"); a.I("s_cbranch_scc1 F_END")
    load_kernarg(a)
    L = VP.get(); T0 = VP.get(); T1 = VP.get(); T2 = VP.get(); T3 = VP.get()
    a.I(f"v_lshrrev_b32 v{T0}, 6, v0"); a.I(f"v_and_b32 v{L}, 63, v0")
    a.I(f"v_readfirstlane_b32 s{SW}, v{T0}")
    a.I(f"s_and_b32 s{ST}, s2, 7"); a.I(f"s_lshr_b32 s{SB}, s{ST}, 2"); a.I(f"s_and_b32 s{ST}, s{ST}, 3")
    a.I(f"s_lshr_b32 s{SIDX}, s2, 3")
    a.I(f"s_lshl_b32 s{SSLOT}, s{ST}, 5"); a.I(f"s_add_u32 s{SSLOT}, s{SSLOT}, s{SIDX}")
    a.I(f"s_lshr_b32 s{STY}, s{SIDX}, 3"); a.I(f"s_lshl_b32 s{ST}, s{ST}, 2"); a.I(f"s_add_u32 s{STY}, s{STY}, s{ST}")
    a.I(f"s_and_b32 s{STX}, s{SIDX}, 7")
    a.I(f"s_lshl_b32 s{SY0}, s{STY}, 2"); a.I(f"s_sub_u32 s{SY0}, s{SY0}, 2")
    a.I(f"s_lshl_b32 s{SX0}, s{STX}, 3"); a.I(f"s_sub_u32 s{SX0}, s{SX0}, 2")
    HALF = VP.get(); M32 = VP.get()
    a.I(f"v_lshrrev_b32 v{HALF}, 5, v{L}"); a.I(f"v_and_b32 v{M32}, 31, v{L}")
    GX = VP.get(4, 1); XA = VP.get(); LW = VP.get(); APS = VP.get(); AHW = VP.get()
    CH = SJ
    a.I(f"s_lshl_b32 s{CH}, s{SB}, 7"); a.I(f"s_lshl_b32 s{ST}, s{SW}, 5"); a.I(f"s_add_u32 s{CH}, s{CH}, s{ST}")
    a.I(f"s_lshl_b32 s{ST}, s{STX}, 4"); a.I(f"s_sub_u32 s{ST}, s{ST}, 4"); a.I(f"s_mov_b32 s{ST+1}, 0")
    a.I(f"s_cmp_eq_u32 s{STX}, 0"); a.I(f"s_cselect_b32 s{ST}, 0, s{ST}"); a.I(f"s_cselect_b32 s{ST+1}, 4, s{ST+1}")
    a.I(f"s_cmp_eq_u32 s{STX}, 7"); a.I(f"s_cselect_b32 s{ST}, 104, s{ST}"); a.I(f"s_cselect_b32 s{ST+1}, -4, s{ST+1}")
    a.I(f"s_lshl_b32 s{SOFF}, s{CH}, 13"); a.I(f"s_add_u32 s{SOFF}, s{SOFF}, s{ST}")
    a.I(f"v_lshl_add_u32 v{T0}, v{M32}, 13, s{SOFF}"); a.I(f"v_add_u32 v{T1}, s{SY0}, v{HALF}")
    a.I(f"v_mov_b32 v{T3}, 0x40000000")
    for k in range(4):
        if k: a.I(f"v_add_u32 v{T1}, 2, v{T1}")
        a.I(f"v_cmp_gt_u32 vcc, 64, v{T1}"); a.I(f"v_lshl_add_u32 v{GX+k}, v{T1}, 7, v{T0}")
        a.I(f"v_cndmask_b32 v{GX+k}, v{T3}, v{GX+k}, vcc")
    a.I(f"s_mul_i32 s{SOFF}, s{SW}, {32*RP}"); a.I(f"s_add_u32 s{SOFF}, s{SOFF}, s{ST+1}"); a.I(f"s_add_u32 s{SOFF}, s{SOFF}, {RAW}")
    a.I(f"v_mul_u32_u24 v{T0}, {RP}, v{M32}"); a.I(f"v_mul_u32_u24 v{T1}, 24, v{HALF}"); a.I(f"v_add3_u32 v{LW}, v{T0}, v{T1}, s{SOFF}")
    a.I(f"s_mul_i32 s{SOFF}, s{SW}, {32*RP}"); a.I(f"s_add_u32 s{SOFF}, s{SOFF}, {RAW + 52}")
    a.I(f"v_lshlrev_b32 v{T1}, 3, v{HALF}"); a.I(f"v_add3_u32 v{XA}, v{T0}, v{T1}, s{SOFF}")
    SBAND = SJ + 4; SGR = SJ + 5
    a.I(f"s_and_b32 s{SBAND}, s2, 3")
    a.I(f"s_lshl_b32 s{ST}, s{SIDX}, 2"); a.I(f"s_lshl_b32 s{ST+1}, s{SB}, 7"); a.I(f"s_add_u32 s{ST+1}, s{ST+1}, s{ST}")
    a.I(f"s_lshl_b32 s{ST+1}, s{ST+1}, 13"); a.I(f"s_lshl_b32 s{SOFF}, s{SBAND}, 11"); a.I(f"s_add_u32 s{SOFF}, s{SOFF}, s{ST+1}")
    a.I(f"v_lshl_add_u32 v{APS}, v{L}, 4, s{SOFF}")
    a.I(f"s_lshl_b32 s{SGR}, s{SB}, 5"); a.I(f"s_add_u32 s{SGR}, s{SGR}, s{SIDX}"); a.I(f"s_lshl_b32 s{SGR}, s{SGR}, 2"); a.I(f"s_add_u32 s{SGR}, s{SGR}, s{SBAND}")
    a.I(f"s_lshl_b32 s{SGR}, s{SGR}, 4"); a.I(f"s_add_u32 s{SGR}, s{SGR}, {ST1}")
    a.I(f"v_and_b32 v{T0}, 1, v{L}"); a.I(f"v_bfe_u32 v{T1}, v{L}, 1, 1"); a.I(f"v_mul_u32_u24 v{T1}, 18, v{T1}"); a.I(f"v_add_u32 v{T0}, v{T0}, v{T1}")
    a.I(f"s_lshl_b32 s{ST}, s{SBAND}, 4"); a.I(f"s_sub_u32 s{ST}, s{ST}, 2"); a.I(f"v_add_u32 v{T0}, s{ST}, v{T0}")
    a.I(f"v_cmp_gt_u32 vcc, 64, v{T0}")
    a.I(f"v_lshl_add_u32 v{T0}, v{T0}, 7, s{ST+1}"); a.I(f"v_bfe_u32 v{T1}, v{L}, 2, 2"); a.I(f"v_lshl_add_u32 v{T0}, v{T1}, 13, v{T0}")
    a.I(f"v_bfe_u32 v{T1}, v{L}, 4, 2"); a.I(f"v_lshl_add_u32 v{T0}, v{T1}, 5, v{T0}")
    a.I(f"v_cndmask_b32 v{AHW}, v{T3}, v{T0}, vcc")
    a.I(f"s_lshl_b32 s{ST}, s{CH}, 13"); a.I(f"s_lshl_b32 s{ST+1}, s{STY}, 9"); a.I(f"s_add_u32 s{ST}, s{ST}, s{ST+1}")
    a.I(f"s_lshl_b32 s{ST+1}, s{STX}, 4"); a.I(f"s_add_u32 s{ST}, s{ST}, s{ST+1}")
    a.I(f"v_lshl_add_u32 v{T0}, v{M32}, 13, s{ST}")
    AO = VP.get(); a.I(f"v_lshl_add_u32 v{AO}, v{HALF}, 7, v{T0}")
    OC16 = VP.get()
    a.I(f"v_bfe_u32 v{T0}, v{L}, 4, 1"); a.I(f"s_lshl_b32 s{ST}, s{SW}, 6"); a.I(f"v_lshl_add_u32 v{OC16}, v{T0}, 4, s{ST}")
    EP = VP.get(2, 2); X4 = VP.get(16, 2); X2 = VP.get(8, 2); XRES = VP.get(8, 2); G1 = VP.get(8, 2); B1 = VP.get(8, 2)
    a.I(f"v_mov_b32 v{T2}, {EPOCH}")
    a.I("s_waitcnt lgkmcnt(0)")
    late = cfg.get("late")
    if late: P.on = False
    P.stamp()
    a.I(f"s_mov_b32 s{SRD}, s{PWS}"); a.I(f"s_and_b32 s{SRD+1}, s{PWS+1}, 0xffff")
    a.I(f"s_mov_b32 s{SRD+2}, {WS_BYTES}"); a.I(f"s_mov_b32 s{SRD+3}, 0x20000")
    a.I(f"s_mov_b32 s{SRX}, s{PX}"); a.I(f"s_and_b32 s{SRX+1}, s{PX+1}, 0xffff")
    a.I(f"s_mov_b32 s{SRX+2}, 0x200000"); a.I(f"s_mov_b32 s{SRX+3}, 0x20000")
    PSL = VP.get(32, 2); HW = VP.get(); SG = VP.get(8, 2); ALN = VP.get()
    for ph in range(2):
        a.V(f"global_load_dwordx4 {vr(G1+4*ph,4)}, v{OC16}, {sr(PG1,2)} offset:{32*ph}", "g1")
        a.V(f"global_load_dwordx4 {vr(B1+4*ph,4)}, v{OC16}, {sr(PB1,2)} offset:{32*ph}", "b1")
    a.I(f"v_mov_b32 v{ALN}, {LN}")
    VM0 = list(a.vm)
    def tile_loads():
        for k in range(4):
            a.V(f"buffer_load_dwordx4 {vr(X4+4*k,4)}, v{GX+k}, {RX}, 0 offen", "xt")
            a.V(f"buffer_load_dwordx2 {vr(X2+2*k,2)}, v{GX+k}, {RX}, 0 offen offset:16", "xt")
    def get_nonce():
        a.I("s_barrier")
        a.D(f"ds_read_b64 {vr(EP,2)}, v{ALN}", "n"); a.wait(lg="n")
        a.I(f"v_readfirstlane_b32 s{SN}, v{EP}"); a.I(f"v_readfirstlane_b32 s{SN+1}, v{EP+1}")
    J = 128
    assert VP.hw <= J and not cfg["joint"]
    a.I(f"s_cmp_eq_u32 s{SW}, 0"); a.I("s_cbranch_scc1 F_STATS")
    a.I(f"s_cmp_lg_u32 s{SW}, 3"); a.I("s_cbranch_scc1 F_NOJOB")
    a.I("s_cmp_ge_u32 s2, 96"); a.I("s_cbranch_scc1 F_NOJOB")
    a.I("s_setprio 3")
    a.I("s_cmp_ge_u32 s2, 64"); a.I("s_cbranch_scc1 F_JE")
    s5, s6, s7, s8, s9 = SJ + 1, SJ + 2, SJ + 3, MINT[1], MINT[1] + 1
    a.I(f"s_mov_b32 s{s5}, s2")
    a.I(f"s_lshr_b32 s{s6}, s{s5}, 5"); a.I(f"s_bfe_u32 s{s7}, s{s5}, 0x20003"); a.I(f"s_and_b32 s{s8}, s{s5}, 7")
    a.I(f"s_lshl_b32 s{s9}, s{s7}, 5"); a.I(f"v_add_u32 v{J}, s{s9}, v{M32}")
    a.I(f"s_movk_i32 s{s9}, 2304"); a.I(f"v_mul_lo_u32 v{J}, v{J}, s{s9}")
    a.I(f"s_lshl_b32 s{s9}, s{s8}, 1"); a.I(f"v_add_u32 v{J+1}, s{s9}, v{HALF}")
    a.I(f"v_mul_u32_u24 v{J+1}, 144, v{J+1}"); a.I(f"v_add_u32 v{J}, v{J}, v{J+1}")
    a.I(f"s_cmp_eq_u32 s{s6}, 0")
    a.I(f"s_cselect_b32 s{MINT[0]}, s{PW1}, s{PW2}"); a.I(f"s_cselect_b32 s{MINT[0]+1}, s{PW1+1}, s{PW2+1}")
    for k in range(9): a.V(f"global_load_dwordx4 {vr(J+8+4*k,4)}, v{J}, {sr(MINT[0],2)} offset:{16*k}", "w")
    if not cfg["tlate"]: tile_loads()
    a.I(f"s_lshl_b32 s{s9}, s{s7}, 3"); a.I(f"s_add_u32 s{s9}, s{s9}, s{s8}"); a.I(f"s_mul_i32 s{s9}, s{s9}, 9216")
    a.I(f"s_mul_i32 s{s6}, s{s6}, {WSZ}"); a.I(f"s_add_u32 s{s9}, s{s9}, s{s6}"); a.I(f"s_add_u32 s{s9}, s{s9}, {W1T}")
    a.I(f"v_lshl_add_u32 v{J+2}, v{L}, 4, s{s9}"); a.I(f"v_add_u32 v{J+3}, 0x1000, v{J+2}"); a.I(f"v_add_u32 v{J+4}, 0x2000, v{J+2}")
    a.I(f"s_mov_b32 s{s6}, 0x07060100"); a.I(f"s_mov_b32 s{s7}, 0x05040302")
    a.I(f"s_lshl_b32 s{s5}, s{s5}, 3"); a.I(f"s_add_u32 s{s5}, s{s5}, {JT}")
    a.wait(vm="w")
    for t in range(9):
        o = J + 48 + 4 * (t % 3)
        for q in range(4):
            lo = J + 8 + 9 * q + t // 2; hi = J + 8 + 9 * q + (9 + t) // 2
            a.I(f"v_perm_b32 v{o+q}, v{hi}, v{lo}, s{s6 + (t & 1)}")
        a.V(f"global_store_dwordx4 v{J + 2 + t // 4}, {vr(o,4)}, {WS} offset:{(t % 4) * 1024} sc0 sc1")
    if cfg["tlate"]: tile_loads()
    a.I(f"v_lshl_add_u32 v{J}, v{L}, 10, s{s5}")
    P.n = 2; P.stamp()
    a.I("s_branch F_TAG")
    a.reset(); a.vm = list(VM0)
    a.label("F_JE")
    a.I(f"s_sub_u32 s{s5}, s2, 64")
    a.I(f"s_lshr_b32 s{s6}, s{s5}, 4"); a.I(f"s_and_b32 s{s7}, s{s5}, 15")
    a.I(f"s_mul_i32 s{s8}, s{s6}, 768"); a.I(f"v_lshl_add_u32 v{J}, v{L}, 1, s{s8}")
    a.I(f"s_lshl_b32 s{s8}, s{s7}, 4"); a.I(f"v_lshl_add_u32 v{J+1}, v{L}, 8, s{s8}")
    for i in range(1, 6): a.I(f"v_add_u32 v{J+1+i}, {i*16384}, v{J+1}")
    for i in range(6): a.V(f"global_load_ushort v{J+8+i}, v{J}, {sr(PT,2)} offset:{128*i}", f"t{i}")
    for i in range(6): a.V(f"global_load_dwordx4 {vr(J+16+4*i,4)}, v{J+1+i}, {sr(PWE,2)}", f"e{i}")
    if cfg["emode"] != 2: a.I("s_barrier")
    if cfg["emode"] == 0: tile_loads()
    a.I(f"s_lshl_b32 s{s8}, s{s6}, 9"); a.I(f"s_lshl_b32 s{s9}, s{s7}, 5"); a.I(f"s_add_u32 s{s8}, s{s8}, s{s9}"); a.I(f"s_add_u32 s{s8}, s{s8}, {EMB}")
    for k in range(8): a.I(f"v_mov_b32 v{J+40+k}, 0")
    a.I(f"s_mov_b32 s{s6}, {NLOG2E:#x}"); a.I(f"s_mov_b32 s{s7}, 0xffff0000")
    a.wait(vm="t5")
    u = J + 8; z = J + 50
    for i in range(6): a.I(f"v_lshlrev_b32 v{u+i}, 16, v{u+i}")
    for i in range(6): a.I(f"v_mul_f32 v{z+i}, s{s6}, v{u+i}")
    for i in range(6): a.I(f"v_exp_f32 v{z+i}, v{z+i}")
    for i in range(6): a.I(f"v_add_f32 v{z+i}, 1.0, v{z+i}")
    for i in range(6): a.I(f"v_rcp_f32 v{z+i}, v{z+i}")
    for i in range(6): a.I(f"v_mul_f32 v{u+i}, v{u+i}, v{z+i}")
    for i in range(6):
        a.wait(vm=f"e{i}")
        for k in range(4):
            a.I(f"v_lshlrev_b32 v{z+6}, 16, v{J+16+4*i+k}"); a.I(f"v_and_b32 v{z+7}, s{s7}, v{J+16+4*i+k}")
            a.I(f"v_fmac_f32 v{J+40+2*k}, v{u+i}, v{z+6}"); a.I(f"v_fmac_f32 v{J+41+2*k}, v{u+i}, v{z+7}")
    allreduce(a, list(range(J + 40, J + 48)), list(range(z, z + 8)))
    a.I(f"v_mov_b32 v{J}, s{s8}")
    a.I("s_mov_b64 exec, 1")
    a.V(f"global_store_dwordx4 v{J}, {vr(J+40,4)}, {WS} sc0 sc1")
    a.V(f"global_store_dwordx4 v{J}, {vr(J+44,4)}, {WS} offset:16 sc0 sc1")
    a.I("s_mov_b64 exec, -1")
    P.n = 2; P.stamp()
    if cfg["emode"] == 2: a.I("s_barrier")
    if cfg["emode"] != 0: tile_loads()
    a.D(f"ds_read_b64 {vr(EP,2)}, v{ALN}", "n"); a.wait(lg="n")
    a.I(f"v_readfirstlane_b32 s{SN}, v{EP}"); a.I(f"v_readfirstlane_b32 s{SN+1}, v{EP+1}")
    a.I("s_setprio 0")
    P.stamp()
    a.I("s_mov_b32 s3, 2")
    a.I("s_branch F_COMMON")
    fence()
    a.label("F_TAG")
    a.hist = []
    get_nonce()
    a.I(f"v_mov_b32 v{J+6}, s{SN}"); a.I(f"v_mov_b32 v{J+7}, s{SN+1}")
    a.I("s_waitcnt vmcnt(8)" if cfg["tlate"] else "s_waitcnt vmcnt(0)")
    a.I("s_mov_b64 exec, 0xffffffff")
    a.I(f"global_store_dwordx2 v{J}, {vr(J+6,2)}, {WS} sc0 sc1")
    a.I("s_mov_b64 exec, -1")
    a.I("s_setprio 0")
    P.stamp()
    a.I("s_mov_b32 s3, 1")
    a.I("s_branch F_COMMON")
    a.reset(); a.vm = list(VM0)
    a.label("F_STATS")
    a.V(f"global_load_dwordx2 {vr(EP,2)}, v{T2}, {WS} sc0 sc1", "ep")
    a.I(f"s_lshl_b32 s{ST}, s{SB}, 12"); a.I(f"s_lshl_b32 s{ST+1}, s{SSLOT}, 3"); a.I(f"s_add_u32 s{ST}, s{ST}, s{ST+1}"); a.I(f"s_add_u32 s{ST}, s{ST}, {ST2}")
    a.I(f"v_lshl_add_u32 v{SG+4}, v{L}, 10, s{ST}"); a.I(f"v_mov_b32 v{SG+6}, 0"); a.I(f"v_mov_b32 v{SG+7}, -1")
    a.I("s_mov_b64 exec, 15")
    a.V(f"global_store_dwordx2 v{SG+4}, {vr(SG+6,2)}, {WS} sc0 sc1", "rs")
    a.I("s_mov_b64 exec, -1")
    for c in range(4):
        if c: a.I(f"v_add_u32 v{APS}, 0x2000, v{APS}")
        for k in range(2): a.V(f"buffer_load_dwordx4 {vr(PSL+8*c+4*k,4)}, v{APS}, {RX}, 0 offen offset:{1024*k}", f"ps{c}")
    a.V(f"buffer_load_dword v{HW}, v{AHW}, {RX}, 0 offen", "hw")
    a.I(f"s_mov_b32 s{ST}, 0x3f803f80")
    for k in range(4): a.I(f"v_mov_b32 v{SG+k}, 0")
    a.wait(vm="ep")
    a.I(f"v_readfirstlane_b32 s{SN}, v{EP}"); a.I(f"v_readfirstlane_b32 s{SN+1}, v{EP+1}")
    a.I(f"s_add_u32 s{SN}, s{SN}, {K_LO:#x}"); a.I(f"s_add_u32 s{SN+1}, s{SN+1}, {K_HI:#x}")
    a.I(f"v_mov_b32 v{EP}, s{SN}"); a.I(f"v_mov_b32 v{EP+1}, s{SN+1}")
    a.D(f"ds_write_b64 v{ALN}, {vr(EP,2)}")
    for c in range(4):
        a.wait(vm=f"ps{c}")
        for k in range(8):
            a.I(f"v_dot2_f32_bf16 v{SG+(k&1)}, v{PSL+8*c+k}, s{ST}, v{SG+(k&1)}")
            a.I(f"v_dot2_f32_bf16 v{SG+2+(k&1)}, v{PSL+8*c+k}, v{PSL+8*c+k}, v{SG+2+(k&1)}")
    a.I(f"v_add_f32 v{SG}, v{SG}, v{SG+1}"); a.I(f"v_add_f32 v{SG+1}, v{SG+2}, v{SG+3}")
    allreduce(a, [SG, SG + 1], [SG + 2, SG + 3])
    a.I(f"v_mov_b32 v{SG+2}, s{SN}"); a.I(f"v_mov_b32 v{SG+3}, s{SN+1}"); a.I(f"v_mov_b32 v{SG+4}, s{SGR}")
    a.I("s_mov_b64 exec, 1")
    a.V(f"global_store_dwordx4 v{SG+4}, {vr(SG,4)}, {WS} sc0 sc1", "st")
    a.I("s_mov_b64 exec, -1")
    P.n = 2; P.stamp()
    a.wait(lg="all")
    a.I("s_barrier")
    tile_loads()
    P.stamp()
    a.I("s_mov_b32 s3, 0")
    a.I("s_branch F_COMMON")
    a.reset(); a.vm = list(VM0)
    a.label("F_NOJOB")
    P.n = 2; P.stamp()
    if cfg["early"]:
        a.I("s_cmp_lt_u32 s2, 96"); a.I("s_cbranch_scc1 F_NJ2")
        a.I("s_waitcnt vmcnt(0)")
        tile_loads()
        a.I("s_barrier")
        a.I("s_branch F_NJ3")
        a.label("F_NJ2")
        a.vm = list(VM0)
    a.I("s_barrier")
    tile_loads()
    if cfg["early"]: a.label("F_NJ3")
    a.D(f"ds_read_b64 {vr(EP,2)}, v{ALN}", "n"); a.wait(lg="n")
    a.I(f"v_readfirstlane_b32 s{SN}, v{EP}"); a.I(f"v_readfirstlane_b32 s{SN+1}, v{EP+1}")
    P.stamp()
    a.I("s_mov_b32 s3, 0")
    fence()
    a.label("F_COMMON")
    a.hist = []
    a.I(f"s_mov_b32 s{SL}, {NLOG2E:#x}"); a.I(f"s_mov_b32 s{SL+1}, {NLOG2E:#x}")
    a.I(f"s_mov_b32 s{SO}, 1.0"); a.I(f"s_mov_b32 s{SO+1}, 1.0"); a.I(f"s_mov_b32 s{SHI}, 0xffff0000")
    LX = VP.get(3, 1); TR = VP.get(); AS1 = VP.get(); AJT = VP.get()
    a.I(f"v_and_b32 v{T3}, 15, v{L}"); a.I(f"v_lshl_add_u32 v{T3}, v{HALF}, 4, v{T3}")
    for i in range(3):
        a.I(f"v_add_u32 v{T0}, {32*i}, v{T3}")
        a.I(f"v_mul_u32_u24 v{T1}, 171, v{T0}"); a.I(f"v_lshrrev_b32 v{T1}, 11, v{T1}")
        a.I(f"v_mul_u32_u24 v{T2}, 12, v{T1}"); a.I(f"v_sub_u32 v{T0}, v{T0}, v{T2}")
        a.I(f"v_mul_u32_u24 v{LX+i}, {A1R}, v{T1}"); a.I(f"v_mul_u32_u24 v{T2}, {PP}, v{T0}")
        a.I(f"v_add3_u32 v{LX+i}, v{LX+i}, v{T2}, v{OC16}")
        a.I(f"v_add_u32 v{T1}, s{SY0}, v{T1}"); a.I(f"v_add_u32 v{T0}, s{SX0}, v{T0}"); a.I(f"v_or_b32 v{T0}, v{T0}, v{T1}")
        a.I(f"v_cmp_gt_u32 {sr(MV[i],2)}, 64, v{T0}")
    a.I(f"v_bfe_u32 v{T0}, v{L}, 4, 1"); a.I(f"v_bfe_u32 v{T1}, v{L}, 2, 2"); a.I(f"v_lshl_add_u32 v{T0}, v{T0}, 3, v{T1}")
    a.I(f"v_mul_u32_u24 v{T0}, {RP}, v{T0}"); a.I(f"v_and_b32 v{T1}, 3, v{L}"); a.I(f"v_lshl_add_u32 v{T0}, v{T1}, 3, v{T0}")
    a.I(f"v_lshl_add_u32 v{T0}, v{HALF}, 5, v{T0}")
    a.I(f"s_mul_i32 s{ST}, s{SW}, {32*RP}"); a.I(f"s_add_u32 s{ST}, s{ST}, {RAW}"); a.I(f"v_add_u32 v{TR}, s{ST}, v{T0}")
    a.I(f"s_lshl_b32 s{ST}, s{CH}, 4"); a.I(f"s_add_u32 s{ST}, s{ST}, {ST1}"); a.I(f"v_lshl_add_u32 v{AS1}, v{M32}, 4, s{ST}")
    a.I(f"v_min_u32 v{T0}, {15 if cfg['w1only'] else 31}, v{L}"); a.I(f"v_lshlrev_b32 v{T0}, 4, v{T0}"); a.I(f"s_and_b32 s{ST}, s2, 31"); a.I(f"s_lshl_b32 s{ST}, s{ST}, 10"); a.I(f"s_add_u32 s{ST}, s{ST}, {JT}"); a.I(f"v_add_u32 v{AJT}, s{ST}, v{T0}")
    AJE = VP.get()
    a.I(f"v_min_u32 v{T0}, {31 if cfg['w1only'] else 15}, v{L}"); a.I(f"v_lshlrev_b32 v{T0}, 4, v{T0}"); a.I(f"s_add_u32 s{ST}, s{ST}, {256 if cfg['w1only'] else 512}"); a.I(f"v_add_u32 v{AJE}, s{ST}, v{T0}")
    AW = VP.get()
    a.I(f"s_mul_i32 s{ST}, s{SW}, 73728")
    if cfg.get("rot"):
        a.I(f"s_and_b32 s{ST+1}, s{SIDX}, 7"); a.I(f"s_mul_i32 s{ST+1}, s{ST+1}, {cfg['rot']}"); a.I(f"s_add_u32 s{ST}, s{ST}, s{ST+1}")
    a.I(f"v_lshl_add_u32 v{AW}, v{L}, 4, s{ST}")
    AB = VP.get(2, 1); AH = VP.get(2, 1)
    for t in range(2):
        if t == 0: a.I(f"v_mov_b32 v{T0}, v{M32}")
        else:
            a.I(f"v_add_u32 v{T0}, 32, v{M32}"); a.I(f"v_cmp_gt_u32 {sr(MP,2)}, 60, v{T0}")
            a.I(f"v_subrev_u32 v{T1}, 16, v{T0}"); a.I(f"v_cndmask_b32 v{T0}, v{T1}, v{T0}, {sr(MP,2)}")
        a.I(f"v_mul_u32_u24 v{T1}, 205, v{T0}"); a.I(f"v_lshrrev_b32 v{T1}, 11, v{T1}")
        a.I(f"v_mul_u32_u24 v{T2}, 10, v{T1}"); a.I(f"v_sub_u32 v{T0}, v{T0}, v{T2}")
        a.I(f"v_mul_u32_u24 v{T2}, {PP}, v{T0}")
        a.I(f"v_mul_u32_u24 v{AB+t}, {A1R}, v{T1}"); a.I(f"v_lshl_add_u32 v{T3}, v{HALF}, 4, v{T2}"); a.I(f"v_add_u32 v{AB+t}, v{AB+t}, v{T3}")
        a.I(f"v_mul_u32_u24 v{AH+t}, {A2R}, v{T1}"); a.I(f"v_lshl_add_u32 v{T3}, v{HALF}, 3, v{T2}"); a.I(f"v_add_u32 v{AH+t}, v{AH+t}, v{T3}")
        a.I(f"s_lshl_b32 s{ST}, s{SW}, 6"); a.I(f"s_add_u32 s{ST}, s{ST}, {A2}"); a.I(f"v_add_u32 v{AH+t}, s{ST}, v{AH+t}")
        a.I(f"v_subrev_u32 v{T2}, 1, v{T1}"); a.I(f"v_subrev_u32 v{T3}, 1, v{T0}")
        a.I(f"v_cmp_gt_u32 vcc, 4, v{T2}"); a.I(f"v_cmp_gt_u32 {sr(MINT[t],2)}, 8, v{T3}")
        a.I(f"s_and_b64 {sr(MINT[t],2)}, {sr(MINT[t],2)}, vcc")
        if t == 1: a.I(f"s_and_b64 {sr(MINT[t],2)}, {sr(MINT[t],2)}, {sr(MP,2)}")
        a.I(f"s_add_u32 s{ST}, s{SY0}, 1"); a.I(f"s_add_u32 s{ST+1}, s{SX0}, 1")
        a.I(f"v_add_u32 v{T1}, s{ST}, v{T1}"); a.I(f"v_add_u32 v{T0}, s{ST+1}, v{T0}"); a.I(f"v_or_b32 v{T0}, v{T0}, v{T1}")
        a.I(f"v_cmp_gt_u32 {sr(MIMG[t],2)}, 64, v{T0}")
    AA = VP.get(); APL = VP.get(); APUB = VP.get()
    a.I(f"v_lshrrev_b32 v{T0}, 3, v{M32}"); a.I(f"v_mul_u32_u24 v{T0}, {A2R}, v{T0}")
    a.I(f"v_and_b32 v{T1}, 7, v{M32}"); a.I(f"v_mul_u32_u24 v{T1}, {PP}, v{T1}")
    a.I(f"v_lshlrev_b32 v{T2}, 4, v{HALF}"); a.I(f"v_add3_u32 v{AA}, v{T0}, v{T1}, v{T2}"); a.I(f"v_add_u32 v{AA}, {A2}, v{AA}")
    a.I(f"s_lshl_b32 s{ST}, s{SB}, 2"); a.I(f"s_add_u32 s{ST}, s{ST}, s{SW}"); a.I(f"s_lshl_b32 s{ST}, s{ST}, 10"); a.I(f"s_add_u32 s{ST}, s{ST}, {ST2}")
    a.I(f"v_lshl_add_u32 v{APL}, v{L}, 4, s{ST}")
    a.I(f"s_lshl_b32 s{ST+1}, s{SSLOT}, 3"); a.I(f"s_add_u32 s{ST}, s{ST}, s{ST+1}"); a.I(f"v_mov_b32 v{APUB}, s{ST}")
    AWU = VP.get(); AE = VP.get(); AG = VP.get()
    a.I(f"s_mul_i32 s{ST}, s{SIDX}, {9216 if cfg['warm'] == 2 else 18432}"); a.I(f"s_mul_i32 s{ST+1}, s{SW}, {2304 if cfg['warm'] == 2 else 5120}"); a.I(f"s_add_u32 s{ST}, s{ST}, s{ST+1}"); a.I(f"s_add_u32 s{ST}, s{ST}, {W1T}")
    a.I(f"v_lshl_add_u32 v{AWU}, v{L}, 4, s{ST}")
    a.I(f"s_lshl_b32 s{ST}, s{SB}, 9"); a.I(f"s_lshl_b32 s{ST+1}, s{SW}, 7"); a.I(f"s_add_u32 s{ST}, s{ST}, s{ST+1}"); a.I(f"s_add_u32 s{ST}, s{ST}, {EMB}")
    a.I(f"v_lshl_add_u32 v{AE}, v{HALF}, 4, s{ST}")
    a.I(f"s_lshl_b32 s{ST}, s{SW}, 6"); a.I(f"v_lshl_add_u32 v{AG}, v{HALF}, 3, s{ST}")
    a.I("s_cmp_eq_u32 s3, 2")
    a.I("s_waitcnt vmcnt(2)" if cfg["emode"] == 0 else "s_waitcnt vmcnt(0)")
    a.I("s_cbranch_scc1 F_STAGE")
    a.I("s_cmp_eq_u32 s3, 1")
    a.I("s_waitcnt vmcnt(1)")
    a.I("s_cbranch_scc1 F_STAGE")
    a.I("s_waitcnt vmcnt(0)")
    a.label("F_STAGE")
    a.vm = []; a.hist = []
    for k in range(4):
        a.D(f"ds_write2_b32 v{LW}, v{X4+4*k}, v{X4+4*k+1} offset0:{12*k} offset1:{12*k+1}")
        a.D(f"ds_write2_b32 v{LW}, v{X4+4*k+2}, v{X4+4*k+3} offset0:{12*k+2} offset1:{12*k+3}")
        a.D(f"ds_write2_b32 v{LW}, v{X2+2*k}, v{X2+2*k+1} offset0:{12*k+4} offset1:{12*k+5}")
    a.wait(lg="all")
    VP.put(X4, 16); VP.put(X2, 8); VP.put(GX, 4); VP.put(LW); VP.put(EP, 2); VP.put(PSL, 32); VP.put(HW); VP.put(SG, 8); VP.put(APS); VP.put(AHW)
    for yy in range(4): a.D(f"ds_read2_b32 {vr(XRES+2*yy,2)}, v{XA} offset0:{6*yy} offset1:{6*yy+1}", "xres")
    X = VP.get(24, 2)
    for ph in range(2):
        for i in range(3):
            for hh in range(2): a.D(f"ds_read_b64_tr_b16 {vr(X+12*ph+4*i+2*hh,2)}, v{TR} offset:{16*RP*ph+64*i+4*RP*hh}", f"x{ph}{i}")
    ACC = VP.get(32, 2); E = VP.get(16, 2); G2 = VP.get(8, 2); B2 = VP.get(8, 2)
    a.wait(lg="all")
    P.stamp()
    PL = VP.get(12, 2)
    a.I(f"s_mov_b32 s{SCNT}, {cfg['spin']}")
    if cfg["joint"]:
        a.I(f"s_cmp_lg_u32 s{SW}, 1"); a.I("s_cbranch_scc1 F_POLL1")
        fence()
        a.label("F_POLL1J")
        a.I(f"buffer_load_dwordx4 {vr(PL,4)}, v{AS1}, {R}, 0 offen sc0 sc1")
        a.I(f"buffer_load_dwordx4 {vr(PL+8,4)}, v{AJT}, {R}, 0 offen sc0 sc1")
        a.I("s_waitcnt vmcnt(0)")
        a.I(f"v_cmp_eq_u64 vcc, {sr(SN,2)}, {vr(PL+2,2)}")
        a.I(f"s_sub_u32 s{SCNT}, s{SCNT}, 1"); a.I("s_cbranch_scc1 F_CHKJ")
        a.I("s_cmp_eq_u64 vcc, -1"); a.I("s_cbranch_scc0 F_POLL1J")
        a.label("F_CHKJ")
        a.I(f"v_cmp_eq_u64 vcc, {sr(SN,2)}, {vr(PL+8,2)}"); a.I(f"v_cmp_eq_u64 {sr(ST,2)}, {sr(SN,2)}, {vr(PL+10,2)}")
        a.I(f"v_mov_b32 v{PL+8}, s{SN}"); a.I(f"v_mov_b32 v{PL+9}, s{SN+1}")
        a.I(f"s_and_b64 vcc, vcc, {sr(ST,2)}"); a.I("s_cmp_eq_u64 vcc, -1"); a.I("s_cbranch_scc0 F_GO1")
        a.I(f"ds_write_b64 v{ALN}, {vr(PL+8,2)} offset:8")
        a.I("s_mov_b32 s3, 1")
        a.I("s_branch F_GO1")
    fence()
    a.label("F_POLL1")
    a.I(f"buffer_load_dwordx4 {vr(PL,4)}, v{AS1}, {R}, 0 offen sc0 sc1")
    a.I("s_waitcnt vmcnt(0)")
    a.I(f"v_cmp_eq_u64 vcc, {sr(SN,2)}, {vr(PL+2,2)}")
    a.I(f"s_sub_u32 s{SCNT}, s{SCNT}, 1"); a.I("s_cbranch_scc1 F_GO1")
    a.I("s_cmp_eq_u64 vcc, -1"); a.I("s_cbranch_scc0 F_POLL1")
    a.label("F_GO1")
    a.vm = []; a.hist = []
    a.I("s_cmp_lg_u32 s3, 2"); a.I("s_cbranch_scc1 F_NOTE")
    a.I(f"s_sub_u32 s{ST}, s2, 64"); a.I(f"s_lshl_b32 s{ST}, s{ST}, 3"); a.I(f"s_add_u32 s{ST}, s{ST}, {JT + 512}")
    a.I(f"v_lshl_add_u32 v{T0}, v{L}, 10, s{ST}"); a.I(f"v_mov_b32 v{PL+8}, s{SN}"); a.I(f"v_mov_b32 v{PL+9}, s{SN+1}")
    a.I("s_mov_b64 exec, 0xffffffff")
    a.I(f"global_store_dwordx2 v{T0}, {vr(PL+8,2)}, {WS} sc0 sc1")
    a.I("s_mov_b64 exec, -1")
    a.label("F_NOTE")
    a.hist = []
    if late: P.on = prof; P.n = 1
    P.stamp()
    def poll_jobs():
        a.I(f"s_mov_b32 s{SCNT}, {cfg['spin']}")
        a.I(f"s_cmp_lg_u32 s{SW}, 1"); a.I("s_cbranch_scc1 F_FLAG")
        fence()
        a.label("F_POLLJ")
        a.I(f"buffer_load_dwordx4 {vr(PL+8,4)}, v{AJT}, {R}, 0 offen sc0 sc1")
        a.I("s_waitcnt vmcnt(0)")
        a.I(f"v_cmp_eq_u64 vcc, {sr(SN,2)}, {vr(PL+8,2)}"); a.I(f"v_cmp_eq_u64 {sr(ST,2)}, {sr(SN,2)}, {vr(PL+10,2)}")
        a.I(f"s_sub_u32 s{SCNT}, s{SCNT}, 1"); a.I("s_cbranch_scc1 F_SETF")
        a.I(f"s_and_b64 vcc, vcc, {sr(ST,2)}"); a.I("s_cmp_eq_u64 vcc, -1"); a.I("s_cbranch_scc0 F_POLLJ")
        a.label("F_SETF")
        a.I(f"v_mov_b32 v{PL+8}, s{SN}"); a.I(f"v_mov_b32 v{PL+9}, s{SN+1}")
        a.I(f"ds_write_b64 v{ALN}, {vr(PL+8,2)} offset:8")
        a.I("s_branch F_GOJ")
        a.label("F_FLAG")
        a.I(f"ds_read_b64 {vr(PL+8,2)}, v{ALN} offset:8")
        a.I("s_waitcnt lgkmcnt(0)")
        a.I(f"v_cmp_eq_u64 vcc, {sr(SN,2)}, {vr(PL+8,2)}")
        a.I(f"s_sub_u32 s{SCNT}, s{SCNT}, 1"); a.I("s_cbranch_scc1 F_GOJ")
        a.I("s_cmp_eq_u64 vcc, -1"); a.I("s_cbranch_scc0 F_FLAG")
        a.label("F_GOJ")
        a.I("s_waitcnt lgkmcnt(0)")
        a.vm = []; a.hist = []; a.lg = []
        P.stamp()
        a.burst(cfg["burst1"]); a.on = True
    lastb = [None]
    def frag(n):
        m = kperm(n % 72); base = W1T + (n // 72) * WSZ + (m // 4) * 4096
        pre = f"s_mov_b32 s{SWO}, {base}" if base != lastb[0] else None
        lastb[0] = base
        return (pre, f"buffer_load_dwordx4 {ar((n % 64) * 4, 4)}, v{AW}, {R}, s{SWO} offen offset:{(m % 4) * 1024}{cfg['wld']}", n, f"w{n}")
    q = []
    if cfg["warm"] == 2:
        for k in range(3): q.append((None, f"buffer_load_dwordx4 {vr(ACC+4*k,4)}, v{AWU}, {R}, 0 offen offset:{1024*k}", None, "wu"))
    elif cfg["warm"]:
        for k in range(4): q.append((None, f"buffer_load_dwordx4 {vr(ACC+4*k,4)}, v{AWU}, {R}, 0 offen offset:{1024*k}", None, "wu"))
        a.I(f"v_add_u32 v{T3}, 0x1000, v{AWU}")
        q.append((None, f"buffer_load_dwordx4 {vr(ACC+16,4)}, v{T3}, {R}, 0 offen", None, "wu"))
    q += [frag(n) for n in range(8)]
    q += [frag(n) for n in range(8, cfg["w2at"])]
    if cfg["warm"] == 2:
        q += [(f"s_mov_b32 s{SJ+1}, {WSZ}", f"buffer_load_dwordx4 {vr(G2,4)}, v{AWU}, {R}, s{SJ+1} offen offset:{1024*k}", None, "wu2") for k in range(3)]
    q += [frag(n) for n in range(cfg["w2at"], 72)]
    q += [(None, f"global_load_dwordx2 {vr(G2+2*k,2)}, v{AG}, {sr(PG2,2)} offset:{16*k}", None, "g2") for k in range(4)]
    q += [(None, f"global_load_dwordx2 {vr(B2+2*k,2)}, v{AG}, {sr(PB2,2)} offset:{16*k}", None, "b2") for k in range(4)]
    if cfg["hold"]: q += [(None, None, None, "hold")]
    q += [frag(n) for n in range(72, 144)]
    a.bg = q; a.period = cfg["period"]
    for st_ in ["row_ror:8", "row_ror:4", "row_ror:2", "row_ror:1"]:
        for v in (PL, PL + 1): a.I(f"v_add_f32_dpp v{v}, v{v}, v{v} {st_} row_mask:0xf bank_mask:0xf")
    for v, t in ((PL, PL + 2), (PL + 1, PL + 3)): a.I(f"v_mov_b32 v{t}, v{v}")
    for v, t in ((PL, PL + 2), (PL + 1, PL + 3)): a.I(f"v_permlane16_swap_b32 v{v}, v{t}")
    for v, t in ((PL, PL + 2), (PL + 1, PL + 3)): a.I(f"v_add_f32 v{v}, v{v}, v{t}")
    MR = VP.get(4, 2)
    VP.put(AS1); VP.put(TR)
    mean_rstd(a, PL, PL + 1, MR, T0)
    if prof: a.I("s_nop 1"); a.I(f"v_readfirstlane_b32 s100, v{MR}")
    SC = VP.get(16, 2); SH = VP.get(16, 2)
    V = VP.get(8, 2); Z = VP.get(8, 2); O = VP.get(4, 2)
    def act1_setup(r, ph):
        unpack(r, SC + 8 * ph, G1 + 4 * ph, 4, SHI); unpack(r, SH + 8 * ph, B1 + 4 * ph, 4, SHI)
        scale_shift(r, SC + 8 * ph, SH + 8 * ph, 4, MR)
    def act1_pass(r, ph, i):
        unpack(r, V, X + 12 * ph + 4 * i, 4, SHI)
        for k in range(4): r.I(f"v_pk_fma_f32 {vr(V+2*k,2)}, {vr(V+2*k,2)}, {vr(SC+8*ph+2*k,2)}, {vr(SH+8*ph+2*k,2)}")
        silu_pairs(r, V, Z, 4, SL, SO)
        for k in range(4): r.I(f"v_cvt_pk_bf16_f32 v{O+k}, v{V+2*k}, v{V+2*k+1}")
        for k in range(4): r.I(f"v_cndmask_b32 v{O+k}, 0, v{O+k}, {sr(MV[i],2)}")
        r.D(f"ds_write_b128 v{LX+i}, {vr(O,4)} offset:{32*ph}")
    act1_setup(a, 0)
    for i in range(3):
        if i == cfg["jpass"]: poll_jobs()
        act1_pass(a, 0, i)
    if cfg["jpass"] == 3: poll_jobs()
    a.wait(lg="all")
    P.stamp()
    a.I("s_barrier")
    B1s = Rec(); act1_setup(B1s, 1)
    for i in range(3): act1_pass(B1s, 1, i)
    NB = 4; BR = VP.get(NB * 8, 2)
    def boff(n): j, tp = divmod(kperm(n), 9); return (tp // 3) * A1R + (tp % 3) * PP + j * 32
    def bread(n):
        for t in range(2): a.D(f"ds_read_b128 {vr(BR+(n%NB)*8+4*t,4)}, v{AB+t} offset:{boff(n)}", f"b{n}")
    LA = 2
    for n in range(LA): bread(n)
    NBAR = 36 - LA
    mg = Merge(a, B1s, 2 * (NBAR - 1), cfg["bpre"], cfg["preon"])
    a.period = cfg["p1"]
    echk = None
    for n in range(72):
        if n == cfg["eiss"]:
            fl = [int(t[1:]) for t in a.vm if t and t[0] == "w" and t[1:].isdigit()]
            echk = min(max(fl + [n]) + 1, 66)
            a.V(f"buffer_load_dwordx4 {vr(PL+8,4)}, v{AJE}, {R}, 0 offen sc0 sc1", "et")
        if n == echk:
            if cfg["w1only"]:
                assert cfg["hold"] and cfg["warm"] in (2, False)
                assert cfg["warm"] is False or sum(b[3] == "wu2" for b in a.bg) == 3
            a.wait(vm="et")
            on = a.on; a.on = False
            a.I(f"s_mov_b32 s{SCNT}, {cfg['spin']}")
            a.I("s_branch F_CHKE")
            a.label("F_POLLE")
            a.I(f"buffer_load_dwordx4 {vr(PL+8,4)}, v{AJE}, {R}, 0 offen sc0 sc1")
            a.I("s_waitcnt vmcnt(0)")
            a.label("F_CHKE")
            a.I(f"v_cmp_eq_u64 vcc, {sr(SN,2)}, {vr(PL+8,2)}"); a.I(f"v_cmp_eq_u64 {sr(ST,2)}, {sr(SN,2)}, {vr(PL+10,2)}")
            a.I(f"s_sub_u32 s{SCNT}, s{SCNT}, 1"); a.I("s_cbranch_scc1 F_GOE")
            a.I(f"s_and_b64 vcc, vcc, {sr(ST,2)}"); a.I("s_cmp_eq_u64 vcc, -1"); a.I("s_cbranch_scc0 F_POLLE")
            a.label("F_GOE")
            for k in range(4): a.V(f"buffer_load_dwordx4 {vr(E+4*k,4)}, v{AE}, {R}, 0 offen offset:{32*k}", "emb")
            a.on = on
        if n == NBAR:
            mg.flush(); a.wait(lg="all"); a.I("s_barrier")
        if n + LA < 72: bread(n + LA)
        a.wait(vm=f"w{n}", lg=f"b{n}")
        for t in range(2):
            c = "0" if n == 0 else vr(ACC + 16 * t, 16)
            a.I(f"v_mfma_f32_32x32x16_bf16 {vr(ACC+16*t,16)}, {ar((n%64)*4,4)}, {vr(BR+(n%NB)*8+4*t,4)}, {c}")
            mg.slot()
        a.consumed = n + 1
    P.stamp()
    VP.put(BR, NB * 8)
    VP.put(G1, 8); VP.put(B1, 8)
    VP.put(X, 24); VP.put(V, 8); VP.put(Z, 8); VP.put(O, 4); VP.put(SC, 16); VP.put(SH, 16); VP.put(LX, 3)
    a.on = False
    if cfg["hold"]:
        while a.bg[0][3] != "hold": a.issue()
        a.bg.pop(0); a.burst(cfg["pre2"])
    a.wait(vm="emb")
    for t in range(2):
        for k in range(8): a.I(f"v_pk_add_f32 {vr(ACC+16*t+2*k,2)}, {vr(ACC+16*t+2*k,2)}, {vr(E+2*k,2)}")
    SS = VP.get(8, 2)
    for t in range(2):
        A_ = ACC + 16 * t
        a.I(f"v_pk_add_f32 {vr(SS+4*t,2)}, {vr(A_,2)}, {vr(A_+2,2)}"); a.I(f"v_pk_mul_f32 {vr(SS+4*t+2,2)}, {vr(A_,2)}, {vr(A_,2)}")
    for k in range(1, 8):
        for t in range(2):
            A_ = ACC + 16 * t
            if k > 1: a.I(f"v_pk_add_f32 {vr(SS+4*t,2)}, {vr(SS+4*t,2)}, {vr(A_+2*k,2)}")
            a.I(f"v_pk_fma_f32 {vr(SS+4*t+2,2)}, {vr(A_+2*k,2)}, {vr(A_+2*k,2)}, {vr(SS+4*t+2,2)}")
    for t in range(2):
        a.I(f"v_add_f32 v{SS+4*t}, v{SS+4*t}, v{SS+4*t+1}"); a.I(f"v_add_f32 v{SS+4*t+2}, v{SS+4*t+2}, v{SS+4*t+3}")
    for t in range(2):
        a.I(f"v_cndmask_b32 v{SS+4*t}, 0, v{SS+4*t}, {sr(MINT[t],2)}"); a.I(f"v_cndmask_b32 v{SS+4*t+2}, 0, v{SS+4*t+2}, {sr(MINT[t],2)}")
    a.I(f"v_add_f32 v{SS}, v{SS}, v{SS+4}"); a.I(f"v_add_f32 v{SS+1}, v{SS+2}, v{SS+6}")
    allreduce(a, [SS, SS + 1], [SS + 2, SS + 3])
    a.I(f"v_cmp_eq_u32 vcc, -1, v{SS+1}"); a.I(f"v_mov_b32 v{SS+2}, 0x7fc00000"); a.I(f"v_cndmask_b32 v{SS+1}, v{SS+1}, v{SS+2}, vcc")
    if any(t == "b2" for t in a.vm): a.wait(vm="b2")
    a.I("s_mov_b64 exec, 1")
    a.V(f"buffer_store_dwordx2 {vr(SS,2)}, v{APUB}, {R}, 0 offen sc0 sc1", "pub")
    a.I("s_mov_b64 exec, -1")
    if late: P.stamp()
    a.burst(cfg["burst2"])
    SC2 = VP.get(16, 2); SH2 = VP.get(16, 2)
    unpack(a, SC2, G2, 8, SHI); unpack(a, SH2, B2, 8, SHI)
    VP.put(G2, 8); VP.put(B2, 8)
    OA = E
    for yy in range(4): unpack(a, OA + 4 * yy, XRES + 2 * yy, 2, SHI)
    a.I(f"s_mov_b32 s{SCNT}, {cfg['spin']}")
    a.V(f"buffer_load_dwordx4 {vr(PL,4)}, v{APL}, {R}, 0 offen sc0 sc1", "p2")
    a.burst(cfg["burst3"])
    a.wait(vm="p2")
    keep = list(a.vm)
    a.I("s_branch F_CHK2")
    a.label("F_POLL2")
    a.I(f"buffer_load_dwordx4 {vr(PL,4)}, v{APL}, {R}, 0 offen sc0 sc1")
    a.I("s_waitcnt vmcnt(0)")
    a.label("F_CHK2")
    a.hist = []
    a.I(f"v_cmp_ne_u32 vcc, -1, v{PL+1}"); a.I(f"v_cmp_ne_u32 {sr(ST,2)}, -1, v{PL+3}")
    a.I(f"s_sub_u32 s{SCNT}, s{SCNT}, 1"); a.I("s_cbranch_scc1 F_GO2")
    a.I(f"s_and_b64 vcc, vcc, {sr(ST,2)}"); a.I("s_cmp_eq_u64 vcc, -1"); a.I("s_cbranch_scc0 F_POLL2")
    a.label("F_GO2")
    a.vm = keep; a.hist = []
    P.stamp()
    PE = VP.get(8, 2); APE = VP.get()
    a.I(f"s_or_b32 s{ST}, s2, s{SW}"); a.I(f"s_cmp_eq_u32 s{ST}, 0"); a.I("s_cbranch_scc0 F_NOEP")
    a.I(f"v_lshlrev_b32 v{APE}, 5, v{L}"); a.I(f"v_add_u32 v{APE}, {ST1 + 2048}, v{APE}")
    a.I(f"buffer_load_dwordx4 {vr(PE,4)}, v{APE}, {R}, 0 offen sc0 sc1")
    a.I(f"buffer_load_dwordx4 {vr(PE+4,4)}, v{APE}, {R}, 0 offen offset:16 sc0 sc1")
    a.label("F_NOEP")
    a.hist = []
    a.on = True; a.acc = 0; a.period = cfg["pa2"]
    a.I(f"v_pk_add_f32 {vr(PL,2)}, {vr(PL,2)}, {vr(PL+2,2)}")
    allreduce(a, [PL, PL + 1], [PL + 2, PL + 3])
    mean_rstd(a, PL, PL + 1, MR, T0)
    if prof: a.I("s_nop 1"); a.I(f"v_readfirstlane_b32 s101, v{MR}")
    scale_shift(a, SC2, SH2, 8, MR)
    if late: P.stamp()
    Z = VP.get(8, 2); O = VP.get(8, 2)
    def act2(r, ph):
        for t in range(2):
            A_ = ACC + 16 * t + 8 * ph; O_ = O + 4 * t
            for k in range(4): r.I(f"v_pk_fma_f32 {vr(A_+2*k,2)}, {vr(A_+2*k,2)}, {vr(SC2+8*ph+2*k,2)}, {vr(SH2+8*ph+2*k,2)}")
            silu_pairs(r, A_, Z, 4, SL, SO)
            for k in range(4): r.I(f"v_cvt_pk_bf16_f32 v{O_+k}, v{A_+2*k}, v{A_+2*k+1}")
            for k in range(4): r.I(f"v_cndmask_b32 v{O_+k}, 0, v{O_+k}, {sr(MIMG[t],2)}")
            w = [("D", f"ds_write_b64 v{AH+t}, {vr(O_+2*q_,2)} offset:{32*ph+16*q_}", None) for q_ in range(2)]
            if t == 1: w = [("I", f"s_mov_b64 exec, {sr(MP,2)}")] + w + [("I", "s_mov_b64 exec, -1")]
            r.block(w)
    r0 = Rec(); act2(r0, 0)
    for x in r0.l:
        if x[0] == "B": emit(a, x)
        else: a.I(x[1])
    B2s = Rec(); act2(B2s, 1)
    NB2 = 6; BR = VP.get(NB2 * 4, 2)
    a.wait(lg="all")
    if late: P.stamp()
    a.I("s_barrier")
    if late: P.stamp()
    def aoff(n): j, tp = divmod(kperm(n), 9); return (tp // 3) * A2R + (tp % 3) * PP + j * 32
    def aread(n): a.D(f"ds_read_b128 {vr(BR+(n%NB2)*4,4)}, v{AA} offset:{aoff(n)}", f"a{n}")
    LA = 3
    a.period = cfg["p2"]
    for n in range(LA): aread(n)
    NBAR = 36 - LA
    mg = Merge(a, B2s, NBAR - 1, cfg["bpre2"])
    for n in range(72):
        if n == NBAR:
            mg.flush(); a.wait(lg="all"); a.I("s_barrier")
        if n + LA < 72: aread(n + LA)
        a.wait(vm=f"w{72+n}", lg=f"a{n}")
        a.I(f"v_mfma_f32_32x32x16_bf16 {vr(OA,16)}, {vr(BR+(n%NB2)*4,4)}, {ar(((72+n)%64)*4,4)}, {vr(OA,16)}")
        mg.slot()
        a.consumed = 72 + n + 1
    assert not a.bg
    a.on = False
    P.stamp()
    for k in range(8): a.I(f"v_cvt_pk_bf16_f32 v{O+k}, v{OA+2*k}, v{OA+2*k+1}")
    for k in range(2):
        a.I(f"v_permlane32_swap_b32 v{O+4*k}, v{O+4*k+2}"); a.I(f"v_permlane32_swap_b32 v{O+4*k+1}, v{O+4*k+3}")
    for k in range(2): a.V(f"global_store_dwordx4 v{AO}, {vr(O+4*k,4)}, {sr(POUT,2)} offset:{256*k}{cfg['ost']}")
    a.I(f"s_or_b32 s{ST}, s2, s{SW}"); a.I(f"s_cmp_eq_u32 s{ST}, 0"); a.I("s_cbranch_scc0 F_FIN")
    a.I(f"s_mov_b32 s{SCNT}, {cfg['spin']}")
    fence()
    a.label("F_POLL3")
    a.I(f"v_cmp_eq_u64 vcc, {sr(SN,2)}, {vr(PE+2,2)}"); a.I(f"v_cmp_eq_u64 {sr(ST,2)}, {sr(SN,2)}, {vr(PE+6,2)}")
    a.I(f"s_sub_u32 s{SCNT}, s{SCNT}, 1"); a.I("s_cbranch_scc1 F_GO3")
    a.I(f"s_and_b64 vcc, vcc, {sr(ST,2)}"); a.I("s_cmp_eq_u64 vcc, -1"); a.I("s_cbranch_scc1 F_GO3")
    a.I(f"buffer_load_dwordx4 {vr(PE,4)}, v{APE}, {R}, 0 offen sc0 sc1")
    a.I(f"buffer_load_dwordx4 {vr(PE+4,4)}, v{APE}, {R}, 0 offen offset:16 sc0 sc1")
    a.I("s_waitcnt vmcnt(0)")
    a.I("s_branch F_POLL3")
    a.label("F_GO3")
    a.hist = []
    a.I(f"v_mov_b32 v{T0}, {EPOCH}"); a.I(f"v_mov_b32 v{PL}, s{SN}"); a.I(f"v_mov_b32 v{PL+1}, s{SN+1}")
    a.I("s_mov_b64 exec, 1")
    a.V(f"global_store_dwordx2 v{T0}, {vr(PL,2)}, {WS} sc0 sc1")
    a.I("s_mov_b64 exec, -1")
    a.label("F_FIN")
    if prof:
        a.wait(vm="all"); P.stamp()
        if cfg.get("agg"): P.dump_agg()
        elif cfg.get("dbg"): P.dump_dbg(SW, *cfg["dbg"])
        else: P.dump(SW, 0)
    a.label("F_END")
    a.I("s_endpgm")
    print("fused vgpr high water", VP.hw, "nops", a.nops, file=sys.stderr)
    return a.text() + descriptor(NAME, 512, 256)

REF = open("standalone__adm_resblock__diffusion.s.ref").read()
HDR = REF.split("; Override launch")[0]
CFG = dict(warm=True, spin=1 << 16, period=80, burst1=5, burst2=24, burst3=4, jpass=2, hold=True, pre2=3, p1=72, eiss=0, early=False, bpre=400, bpre2=0, p2=48, pa2=56, joint=False, tlate=True, emode=2, w2at=40, ost='', wld='', w1only=False, preon=False, fence=True)
def build_all(prof=False, cfg=None):
    c = dict(CFG); c.update(cfg or {})
    s = HDR
    s += f"; @launch grid=(256,1,1) block=(256,1,1) lds={LDS3}\n"
    s += '.amdgcn_target "amdgcn-amd-amdhsa--gfx950"\n'
    s += gen_fused(prof, c)
    return s
if __name__ == "__main__":
    prof = "prof" in sys.argv
    open(sys.argv[1], "w").write(build_all(prof))
```
